```python
import torch

def _softmax(x, axis=-1):
    return torch.softmax(x, dim=axis)
def _gelu(x):
    return torch.nn.functional.gelu(x, approximate="tanh")
def _silu(x):
    return torch.nn.functional.silu(x)
def _sigmoid(x):
    return torch.sigmoid(x)
def _layernorm(x, axis=-1, eps=1e-5):
    m = x.mean(dim=axis, keepdim=True)
    v = x.var(dim=axis, keepdim=True, unbiased=False)
    return (x - m) / torch.sqrt(v + eps)
def _scatter_add(tgt, idx, src, axis=0):
    return tgt.clone().index_add_(axis, idx, src)
def _segment_sum(src, seg, n):
    out = torch.zeros((n,) + src.shape[1:], dtype=src.dtype)
    return out.index_add_(0, seg, src)
def _pad(x, pw):
    flat = tuple(v for pair in reversed(pw) for v in pair)
    return torch.nn.functional.pad(x, flat)

kernel_name = 'interleave_layers__linear_kernel_hedgehog__dense_activation_silu__prompt'

def setup_inputs():

    _w = (lambda a: (lambda t: t.to(torch.bfloat16) if t.is_floating_point() else t)(torch.as_tensor(a)))
    def _A_setup():
        B, S, D, H = 1, 2048, 512, 32
        Dh = D // H
        return {
            "x": _w((lambda *s: torch.randn(*s, dtype=torch.bfloat16) * 0.05)(B, S, D)),
            "wqkv": _w((lambda *s: torch.randn(*s, dtype=torch.bfloat16) * 0.4)(D, 3 * D)),
            "w_phi": _w((lambda *s: torch.randn(*s, dtype=torch.bfloat16) * 0.4)(H, Dh, Dh) * (Dh ** -0.5)),
            "wo": _w((lambda *s: torch.randn(*s, dtype=torch.bfloat16) * 0.05)(D, D)),
        }
    _A_in = _A_setup()

    def _B_setup():
        B, S, D, F = 1, 2048, 512, 1792
        return {
            "x": _w((lambda *s: torch.randn(*s, dtype=torch.bfloat16) * 0.05)(B, S, D)),
            "w1": _w((lambda *s: torch.randn(*s, dtype=torch.bfloat16) * 1.6)(D, F) * (D ** -0.5)),
            "w2": _w((lambda *s: torch.randn(*s, dtype=torch.bfloat16) * 1.6)(F, D) * (F ** -0.5)),
        }
    _B_in = _B_setup()

    return {
        "A_x": _A_in["x"],
        "A_wqkv": _A_in["wqkv"],
        "A_w_phi": _A_in["w_phi"],
        "A_wo": _A_in["wo"],
        "B_x": _B_in["x"],
        "B_w1": _B_in["w1"],
        "B_w2": _B_in["w2"],
    }

def reference(A_x, A_wqkv, A_w_phi, A_wo, B_x, B_w1, B_w2):
    def _A_ref(x, wqkv, w_phi, wo):
        B, S, D = x.shape
        H = 32; Dh = D // H
        qkv = (lambda x, *d: x.permute(*d))((x @ wqkv).reshape(B, S, 3, H, Dh), 2, 0, 3, 1, 4)
        q, k, v = qkv[0], qkv[1], qkv[2]
        pq = torch.einsum("bhsd,hdf->bhsf", q, w_phi)
        pk = torch.einsum("bhsd,hdf->bhsf", k, w_phi)
        phi_q = torch.concatenate([_softmax(pq, axis=-1), _softmax(-pq, axis=-1)], axis=-1)
        phi_k = torch.concatenate([_softmax(pk, axis=-1), _softmax(-pk, axis=-1)], axis=-1)
        kv = torch.einsum("bhsf,bhsd->bhfd", phi_k, v)
        z  = torch.einsum("bhsf->bhf", phi_k)
        num = torch.einsum("bhqf,bhfd->bhqd", phi_q, kv)
        den = torch.einsum("bhqf,bhf->bhq", phi_q, z)[..., None] + 1e-6
        o = num / den
        return (lambda x, *d: x.permute(*d))(o, 0, 2, 1, 3).reshape(B, S, D) @ wo

    def _B_ref(x, w1, w2):
        h = torch.einsum("bsd,df->bsf", x, w1)
        h = _silu(h)
        out = torch.einsum("bsf,fd->bsd", h, w2)
        return out

    x = A_x
    x = x + _A_ref(_layernorm(x, axis=-1), A_wqkv, A_w_phi, A_wo)
    x = x + _B_ref(_layernorm(x, axis=-1), B_w1, B_w2)
    x = x + _A_ref(_layernorm(x, axis=-1), A_wqkv, A_w_phi, A_wo)
    x = x + _B_ref(_layernorm(x, axis=-1), B_w1, B_w2)
    return x
```

```python
import re

TRANS = ("v_exp_f32", "v_log_f32", "v_rcp_f32", "v_rsq_f32", "v_sqrt_f32", "v_sin_f32", "v_cos_f32")
_REG = re.compile(r"^(-|abs\()?([vas])(?:\[(\d+):(\d+)\]|(\d+))\)?$")

def parse_reg(tok):
    t = tok.strip()
    if t.startswith("-"): t = t[1:]
    if t.startswith("abs(") and t.endswith(")"): t = t[4:-1]
    if t.startswith("|") and t.endswith("|"): t = t[1:-1]
    if t in ("vcc", "exec", "m0", "scc"): return [(t, 0)]
    if t in ("vcc_lo", "vcc_hi"): return [("vcc", 0)]
    if t in ("exec_lo", "exec_hi"): return [("exec", 0)]
    m = re.match(r"^([vas])\[(\d+):(\d+)\]$", t)
    if m: return [(m.group(1), i) for i in range(int(m.group(2)), int(m.group(3)) + 1)]
    m = re.match(r"^([vas])(\d+)$", t)
    if m: return [(m.group(1), int(m.group(2)))]
    return []

def split_ops(s):
    out, depth, cur = [], 0, ""
    for ch in s:
        if ch in "[(": depth += 1
        if ch in "])": depth -= 1
        if ch == "," and depth == 0:
            out.append(cur.strip()); cur = ""
        else: cur += ch
    if cur.strip(): out.append(cur.strip())
    return out

class Ins:
    def __init__(self, text, tag=None, alt=False):
        self.text = text; self.tag = tag; self.alt = alt
        self.kind = "other"; self.reads = set(); self.writes = set(); self.slots = 1
        self.passes = 0; self.srcC = set(); self.srcAB = set(); self.op = ""
        self.wide_store = False; self.is_lds_dma = False
        self.parse()
    def parse(self):
        t = self.text.split(";")[0].strip()
        if not t or t.endswith(":") or t.startswith("."):
            self.kind = "label" if t.endswith(":") else "dir"; self.slots = 0; return
        parts = t.split(None, 1)
        op = parts[0]; self.op = op
        rest = parts[1] if len(parts) > 1 else ""
        ops = split_ops(rest)
        mods = []
        if ops:
            last = ops[-1].split()
            ops[-1] = last[0] if last else ""
            mods = last[1:]
        self.mods = mods
        R = [parse_reg(o) for o in ops]
        def rd(*idx):
            for i in idx:
                if i < len(R): self.reads.update(R[i])
        def wr(*idx):
            for i in idx:
                if i < len(R): self.writes.update(R[i])
        n = len(R)
        if op.startswith("v_mfma"):
            self.kind = "mfma"; self.passes = 8 if "32x32" in op else 4
            wr(0); rd(1, 2, 3); self.srcC = set(R[3]); self.srcAB = set(R[1]) | set(R[2])
        elif op.startswith("v_"):
            self.kind = "valu"
            if op.startswith("v_cmp"):
                wr(0); rd(*range(1, n))
            elif op.startswith("v_permlane"):
                wr(0, 1); rd(0, 1)
            elif op.startswith(("v_fmac", "v_dot2c", "v_pk_fmac")):
                wr(0); rd(*range(0, n))
            elif op.startswith("v_cndmask"):
                wr(0); rd(*range(1, n))
                if n == 3: self.reads.add(("vcc", 0))
            elif op.startswith(("v_add_co", "v_sub_co", "v_addc_co", "v_subb_co")):
                wr(0, 1); rd(*range(2, n))
            else:
                wr(0); rd(*range(1, n))
        elif op.startswith("ds_"):
            self.kind = "ds"
            if op.startswith(("ds_read", "ds_bpermute", "ds_swizzle", "ds_permute")):
                wr(0); rd(*range(1, n))
            else:
                rd(*range(0, n))
        elif op.startswith(("buffer_", "global_")):
            self.kind = "vmem"
            if op in ("buffer_inv", "buffer_wbl2"):
                pass
            elif "lds" in mods:
                rd(*range(0, n)); self.reads.add(("m0", 0)); self.is_lds_dma = True
            elif "load" in op:
                wr(0); rd(*range(1, n))
            else:
                rd(*range(0, n))
                if op.endswith(("x3", "x4")): self.wide_store = True; self.store_data = set(R[0])
        elif op.startswith("s_"):
            if op in ("s_nop",):
                self.kind = "nop"; self.slots = int(ops[0], 0) + 1
            elif op.startswith(("s_waitcnt", "s_barrier", "s_branch", "s_cbranch", "s_endpgm", "s_setprio", "s_sleep", "s_setpc")):
                self.kind = "other"
            elif op.startswith(("s_load", "s_memtime", "s_memrealtime", "s_buffer_load")):
                self.kind = "smem"; wr(0); rd(*range(1, n))
            elif op.startswith("s_cmp") or op.startswith("s_bitcmp"):
                self.kind = "salu"; rd(*range(0, n))
            else:
                self.kind = "salu"; wr(0); rd(*range(1, n))
                if "saveexec" in op: self.writes.add(("exec", 0)); self.reads.add(("exec", 0))
        else:
            raise ValueError("unknown op " + t)

def isv(r): return r[0] in ("v", "a")
def iss(r): return r[0] in ("s", "vcc")

def need_gap(P, I):
    g = 0
    if P.kind == "valu":
        wv = {r for r in P.writes if isv(r)}
        ws = {r for r in P.writes if iss(r)}
        if wv:
            if I.kind == "mfma" and (wv & I.reads): g = max(g, 2)
            if I.kind == "valu":
                if I.op.startswith("v_permlane") and (wv & I.reads): g = max(g, 2)
                if I.op.startswith(("v_readfirstlane", "v_readlane")) and (wv & I.reads): g = max(g, 1)
                if "dpp" in I.text or "row_" in I.text:
                    if wv & I.reads: g = max(g, 2)
                if P.op in TRANS and (wv & I.reads): g = max(g, 1)
        if ws:
            if I.kind == "valu" and (ws & I.reads): g = max(g, 4 if I.op.startswith(("v_readlane", "v_writelane")) else 2)
            if I.kind == "vmem" and (ws & I.reads): g = max(g, 5)
            if I.kind == "mfma" and (ws & I.reads): g = max(g, 2)
    if P.kind == "mfma":
        D = P.writes
        big = {8: 12, 4: 8}[P.passes]; ov = {8: 10, 4: 6}[P.passes]; war = {8: 7, 4: 3}[P.passes]
        if I.kind in ("valu", "ds", "vmem") and (D & (I.reads | I.writes)): g = max(g, big)
        if I.kind == "mfma":
            if D & I.srcAB: g = max(g, big)
            if D & I.srcC:
                if not (I.srcC == D and I.passes == P.passes): g = max(g, ov)
            elif D & I.writes:
                g = max(g, ov)
        if I.kind == "valu" and (P.srcC & I.writes): g = max(g, war)
    if P.kind == "salu" and ("m0", 0) in P.writes and I.is_lds_dma: g = max(g, 1)
    if P.kind == "vmem" and P.wide_store:
        if P.store_data & I.writes: g = max(g, 2 if I.kind == "valu" else 1)
    if P.kind == "salu" and ("exec", 0) in P.writes and I.kind == "mfma": g = max(g, 0)
    return g

class Asm:
    def __init__(self):
        self.items = []
        self.uid = 0
    def __call__(self, text, tag=None, alt=False):
        for line in text.strip("\n").split("\n"):
            if line.strip():
                self.items.append(Ins(line.strip(), tag=tag, alt=alt))
    def raw(self, ins): self.items.append(ins)
    def label(self, name): self.items.append(Ins(name + ":"))
    def newlabel(self, base="L"):
        self.uid += 1; return f"{base}_{self.uid}"
    def wait_vm(self, tag): self.items.append(("WVM", tag))
    def wait_lgkm(self, tag): self.items.append(("WLG", tag))
    def vm_reset(self): self.items.append(("VMRESET",))
    def lg_reset(self): self.items.append(("LGRESET",))
    def fence(self): self.items.append(("FENCE",))

def finalize(items, verbose=False):
    out = []
    vm, lg = [], []
    hist = []
    pos = 0
    nnop = 0
    def emit(ins):
        nonlocal pos, nnop
        if ins.kind in ("label", "dir"):
            out.append(ins.text); return
        need = 0
        for P, pp in hist:
            gap = pos - pp - P.slots
            r = need_gap(P, ins)
            if r > gap: need = max(need, r - gap)
        while need > 0:
            k = min(need, 16)
            out.append(f"  s_nop {k-1}"); pos += k; need -= k; nnop += k
        out.append("  " + ins.text)
        hist.append((ins, pos)); pos += ins.slots
        while hist and pos - hist[0][1] > 24: hist.pop(0)
    for it in items:
        if isinstance(it, tuple):
            if it[0] == "WVM":
                tag = it[1]
                idx = [i for i, t in enumerate(vm) if t == tag]
                if idx:
                    n = len(vm) - 1 - idx[-1]
                    assert n <= 63 or True
                    emit(Ins(f"s_waitcnt vmcnt({min(n,63)})"))
                    vm = vm[idx[-1] + 1:] if n <= 63 else vm[len(vm)-63:]
            elif it[0] == "WLG":
                tag = it[1]
                idx = [i for i, t in enumerate(lg) if t == tag]
                if idx:
                    n = len(lg) - 1 - idx[-1]
                    emit(Ins(f"s_waitcnt lgkmcnt({min(n,15)})"))
                    lg = lg[idx[-1] + 1:] if n <= 15 else lg[len(lg)-15:]
            elif it[0] == "VMRESET": vm = []
            elif it[0] == "LGRESET": lg = []
            elif it[0] == "FENCE":
                out.append("  s_nop 15"); pos += 16; hist = []
            continue
        ins = it
        if ins.kind == "vmem" and not ins.alt and ins.op not in ("buffer_inv",):
            vm.append(ins.tag)
        if ins.kind == "ds" and not ins.alt: lg.append(ins.tag)
        if ins.kind == "smem": lg.append("SMEM?")
        if ins.op == "s_waitcnt" and not ins.alt:
            m = re.search(r"vmcnt\((\d+)\)", ins.text)
            if m:
                n = int(m.group(1)); vm = vm[len(vm) - n:] if n else []
            m = re.search(r"lgkmcnt\((\d+)\)", ins.text)
            if m:
                n = int(m.group(1)); lg = lg[len(lg) - n:] if n else []
        emit(ins)
    if verbose: print("inserted nop slots:", nnop)
    return "\n".join(out) + "\n"
```

```python
import sys
sys.path.insert(0, "dev")
from asmlib import *

NAME = "interleave_layers__linear_kernel_hedgehog__dense_activation_silu__prompt"
STOP = int(sys.argv[2]) if len(sys.argv) > 2 else 99
OUT = sys.argv[1] if len(sys.argv) > 1 else f"cdna_kernels/{NAME}.s"

WS_FLAG = 0x000000; WS_HELLO = 0x004000; WS_KVF = 0x006000; WS_PKF = 0x008000
WS_STATS = 0x010000
WS_KVP = 0x080000
WS_KVZ = 0x280000
WS_X = 0x400000; WS_H = 0x600000; WS_W2P = 0xE00000; WS_WQP = 0x1000000
WS_DBG = 0x1400000
WS_SIZE = 0x10000000

S_X, S_WQKV, S_WPHI, S_WO, S_W1, S_W2, S_OUT, S_DBG, S_WS = 4, 8, 12, 16, 20, 24, 28, 32, 36
def srd(b): return f"s[{b}:{b+3}]"
sWAVE, sTEAM, sIDX, sTAGLO, sTAGHI, sMODE = 40, 41, 42, 44, 45, 46
sLO32 = 48
sC16 = 50
sT0 = 52
sSPIN = 80
vL16, vTR64, vTR64Q, vTRS0, vTRS1, vTRO0, vTRO1, vL8 = 255, 254, 253, 252, 251, 250, 249, 248
vDMA1K, vDMAW1, vDMAQ, vLANE = 247, 246, 245, 244
vRS4 = 243
aWPHI = 224; aIP = 232; aIM = 236; aCSK = 240; aCSV = 244; aCSQ = 248

LOG2E = 0x3fb8aa3b
a = Asm()
def v(i, n=1): return f"v{i}" if n == 1 else f"v[{i}:{i+n-1}]"
def ag(i, n=1): return f"a{i}" if n == 1 else f"a[{i}:{i+n-1}]"
MF = "v_mfma_f32_32x32x16_bf16"

def prologue():
    a("s_cmp_ge_u32 s2, 256")
    a("s_cbranch_scc1 L_end")
    a("s_load_dwordx8 s[52:59], s[0:1], 0")
    a("s_load_dwordx8 s[60:67], s[0:1], 32")
    a("s_load_dwordx4 s[68:71], s[0:1], 64")
    a("s_memrealtime s[72:73]")
    a(f"v_and_b32 v{vLANE}, 63, v0")
    a("v_lshrrev_b32 v1, 6, v0")
    a(f"v_readfirstlane_b32 s{sWAVE}, v1")
    a("s_and_b32 s74, s2, 7")
    a("s_lshr_b32 s75, s2, 3")
    a(f"s_and_b32 s{sIDX}, s75, 15")
    a("s_lshr_b32 s75, s75, 4")
    a("s_lshl_b32 s74, s74, 1")
    a(f"s_add_u32 s{sTEAM}, s74, s75")
    a(f"s_mov_b64 s[{sLO32}:{sLO32+1}], 0xffffffff")
    a(f"s_mov_b32 s{sC16}, 0x0000ffff")
    a(f"s_mov_b32 s{sC16+1}, 0x0000ffff")
    L = vLANE
    a(f"v_lshlrev_b32 v{vL16}, 4, v{L}")
    a(f"v_lshlrev_b32 v{vL8}, 3, v{L}")
    a(f"v_lshrrev_b32 v1, 5, v{L}")
    a(f"v_bfe_u32 v2, v{L}, 2, 2")
    a(f"v_and_b32 v3, 3, v{L}")
    a(f"v_bfe_u32 v4, v{L}, 4, 1")
    a(f"v_lshlrev_b32 v{vRS4}, 4, v1")
    a("v_lshl_add_u32 v5, v1, 4, v2")
    a("v_lshlrev_b32 v6, 6, v5")
    a("v_lshl_add_u32 v6, v4, 5, v6")
    a(f"v_lshl_add_u32 v{vTR64}, v3, 3, v6")
    a(f"v_add_u32 v{vTR64Q}, 0x10000, v{vTR64}")
    a("v_and_b32 v7, 1, v3")
    a("v_lshlrev_b32 v7, 5, v7")
    a("v_lshl_add_u32 v7, v4, 4, v7")
    a("v_lshrrev_b32 v8, 1, v3")
    a("v_lshl_add_u32 v7, v8, 3, v7")
    a("v_lshrrev_b32 v8, 1, v2")
    a("v_lshl_add_u32 v7, v8, 6, v7")
    a(f"v_lshl_add_u32 v{vTRS0}, v5, 7, v7")
    a(f"v_xor_b32 v{vTRS1}, 64, v{vTRS0}")
    a("v_lshl_add_u32 v5, v1, 2, v2")
    a(f"v_lshl_add_u32 v{vTRO0}, v5, 7, v7")
    a(f"v_xor_b32 v{vTRO1}, 64, v{vTRO0}")
    a(f"v_lshrrev_b32 v5, 3, v{L}")
    a(f"v_and_b32 v6, 7, v{L}")
    a("v_lshlrev_b32 v8, 2, v4")
    a("v_xor_b32 v6, v6, v8")
    a("v_lshlrev_b32 v6, 4, v6")
    a(f"v_lshl_add_u32 v{vDMA1K}, v5, 10, v6")
    a("s_movk_i32 s74, 3584")
    a("v_mul_lo_u32 v8, v5, s74")
    a(f"v_add_u32 v{vDMAW1}, v8, v6")
    a(f"v_lshrrev_b32 v5, 2, v{L}")
    a("s_movk_i32 s74, 3072")
    a("v_mul_lo_u32 v8, v5, s74")
    a(f"v_lshl_add_u32 v{vDMAQ}, v3, 4, v8")
    a("s_waitcnt lgkmcnt(0)")
    sizes = [2048*512*2, 512*1536*2, 32*16*16*2, 512*512*2, None, 512*1792*2, 1792*512*2, 2048*512*2, 256, WS_SIZE]
    dst = [S_X, S_WQKV, S_WPHI, S_WO, None, S_W1, S_W2, S_OUT, S_DBG, S_WS]
    for i, (d, sz) in enumerate(zip(dst, sizes)):
        if d is None: continue
        a(f"s_mov_b32 s{d}, s{52+2*i}")
        a(f"s_mov_b32 s{d+1}, s{53+2*i}")
        a(f"s_mov_b32 s{d+2}, {sz}")
        a(f"s_mov_b32 s{d+3}, 0x00020000")
    a(f"s_lshl_b64 s[{sTAGLO}:{sTAGHI}], s[72:73], 8")
    a(f"s_or_b32 s{sTAGLO}, s{sTAGLO}, 0x80")
    a(f"s_or_b32 s74, s2, s{sWAVE}")
    a("s_cmp_eq_u32 s74, 0")
    a("s_cbranch_scc0 L_notag")
    a(f"v_mov_b32 v2, s{sTAGLO}")
    a(f"v_mov_b32 v3, s{sTAGHI}")
    a("v_mov_b32 v1, 0")
    a(f"buffer_store_dwordx2 v[2:3], v1, {srd(S_DBG)}, 0 offen sc0 sc1", alt=True)
    a.label("L_notag")

def onehot(dst, vslot, t0, t1, is_agpr=False):
    a(f"v_and_b32 v{t0}, 1, v{vslot}")
    a(f"v_lshlrev_b32 v{t0}, 4, v{t0}")
    a(f"s_movk_i32 s74, 0x3f80")
    a(f"v_lshlrev_b32 v{t0}, v{t0}, s74")
    a(f"v_lshrrev_b32 v{t1}, 1, v{vslot}")
    for q in range(4):
        a(f"v_cmp_eq_u32 vcc, {q}, v{t1}")
        if is_agpr:
            a(f"v_cndmask_b32 v{t0+2}, 0, v{t0}, vcc")
            a(f"v_accvgpr_write_b32 a{dst+q}, v{t0+2}")
        else:
            a(f"v_cndmask_b32 v{dst+q}, 0, v{t0}, vcc")

def consts():
    L = vLANE
    a(f"v_and_b32 v1, 3, v{L}")
    a(f"v_bfe_u32 v2, v{L}, 3, 1")
    a("v_lshl_add_u32 v1, v2, 2, v1")
    a(f"v_bfe_u32 v2, v{L}, 2, 1")
    a(f"v_lshrrev_b32 v3, 5, v{L}")
    a("v_xor_b32 v2, v2, v3")
    a("v_lshl_add_u32 v1, v2, 3, v1")
    a(f"v_bfe_u32 v2, v{L}, 4, 1")
    a("v_lshl_add_u32 v4, v2, 3, v1")
    onehot(aIP, 4, 10, 11, True)
    a("v_xor_b32 v2, 1, v2")
    a("v_lshl_add_u32 v4, v2, 3, v1")
    onehot(aIM, 4, 10, 11, True)

def load_wphi():
    L = vLANE
    a(f"v_and_b32 v1, 15, v{L}")
    a("v_lshlrev_b32 v1, 1, v1")
    a(f"v_lshrrev_b32 v2, 5, v{L}")
    a("v_lshl_add_u32 v1, v2, 7, v1")
    a(f"s_lshl_b32 s74, s{sIDX}, 10")
    for hl in range(2):
        for j in range(8):
            d = (j & 3) + 8 * (j >> 2)
            a(f"buffer_load_ushort v{16+hl*8+j}, v1, {srd(S_WPHI)}, s74 offen offset:{hl*512+d*32}", tag="wphi")

def fix_wphi():
    L = vLANE
    a.wait_vm("wphi")
    a(f"v_bfe_u32 v2, v{L}, 4, 1")
    for hl in range(2):
        a(f"v_cmp_eq_u32 vcc, {hl}, v2")
        for q in range(4):
            a(f"v_lshl_or_b32 v10, v{16+hl*8+2*q+1}, 16, v{16+hl*8+2*q}")
            a(f"v_cndmask_b32 v10, 0, v10, vcc")
            a(f"v_accvgpr_write_b32 a{aWPHI+hl*4+q}, v10")

LDS_K, LDS_V, LDS_Q, LDS_XS = 0, 32768, 65536, 98304

def dma_wqkv_raw():
    a(f"s_lshl_b32 s74, s{sIDX}, 6")
    a(f"s_mul_i32 s75, s{sWAVE}, {16*3072}")
    a("s_add_u32 s74, s74, s75")
    a(f"s_lshl_b32 s75, s{sWAVE}, 10")
    for sec, lb, tg in ((1, LDS_K, "wK"), (2, LDS_V, "wV"), (0, LDS_Q, "wQ")):
        for n in range(8):
            a(f"s_add_u32 m0, s75, {lb + n*4096}")
            a(f"s_add_u32 s76, s74, {sec*1024 + n*64*3072}")
            a(f"buffer_load_dwordx4 v{vDMAQ}, {srd(S_WQKV)}, s76 offen lds", tag=tg)

def x_stage_dma(half):
    L = vLANE
    if half == 0:
        a(f"v_lshrrev_b32 v1, 5, v{L}")
        a(f"v_and_b32 v2, 31, v{L}")
        a("v_xor_b32 v2, v2, v1")
        a("v_lshlrev_b32 v2, 4, v2")
        a("v_lshl_add_u32 v200, v1, 10, v2")
        a(f"s_lshl_b32 s77, s{sTEAM}, 17")
        a(f"s_lshl_b32 s78, s{sWAVE}, 15")
        a("s_add_u32 s77, s77, s78")
        a(f"s_lshl_b32 s78, s{sWAVE}, 14")
        a(f"s_add_u32 s78, s78, {LDS_XS}")
    for n in range(16):
        a(f"v_xor_b32 v{201+(n&1)}, {((2*n)&15)<<4}, v200")
        a(f"s_add_u32 m0, s78, {n*1024}")
        a(f"s_add_u32 s76, s77, {n*2048 + half*512}")
        a(f"buffer_load_dwordx4 v{201+(n&1)}, {srd(S_X)}, s76 offen lds", tag=f"xs{half}")

def x_stage_read(half):
    L = vLANE
    if half == 0:
        a(f"v_and_b32 v1, 31, v{L}")
        a(f"v_lshrrev_b32 v2, 5, v{L}")
        a("v_lshlrev_b32 v2, 1, v2")
        a("v_and_b32 v3, 15, v1")
        a("v_xor_b32 v2, v2, v3")
        a("v_lshlrev_b32 v2, 4, v2")
        a("v_lshl_add_u32 v203, v1, 9, v2")
        a("v_add_u32 v203, s78, v203")
    a.wait_vm(f"xs{half}")
    for f in range(16):
        Tk, s = f >> 1, f & 1
        cst = ((4 * Tk + s) & 15) << 4
        a(f"v_xor_b32 v{204+(f&1)}, {cst}, v203")
        r = (half * 16 + f) * 4
        a(f"ds_read_b128 {v(r,4)}, v{204+(f&1)} offset:{(Tk>>2)*256}", tag=f"xr{half}")

def trW(dst, base_v, off, tag):
    a(f"ds_read_b64_tr_b16 {v(dst,2)}, v{base_v} offset:{off}", tag=tag)
    a(f"ds_read_b64_tr_b16 {v(dst+2,2)}, v{base_v} offset:{off+256}", tag=tag)

def zero_acc(r, n=16):
    for i in range(n): a(f"v_mov_b32 v{r+i}, 0")

ACC_K, ACC_V, ACC_Q = 128, 144, 160
WB = 176

def p1_colsum():
    for i in range(4): a(f"v_mov_b32 v{200+i}, 0x3f803f80")
    zero_acc(204)
    a(f"s_cmp_ge_u32 s{sWAVE}, 3")
    a("s_cbranch_scc1 L_cs_skip")
    a(f"s_lshl_b32 s74, s{sWAVE}, 15")
    a(f"v_add_u32 v220, s74, v{vTR64}")
    for ks in range(32):
        Tk, s = ks >> 1, ks & 1
        b = WB + (ks & 3) * 4
        trW(b, 220, (32 * Tk + 8 * s) * 64, f"cs{ks}")
        if ks >= 3:
            a.wait_lgkm(f"cs{ks-3}")
            a(f"{MF} {v(204,16)}, {v(200,4)}, {v(WB+((ks-3)&3)*4,4)}, {v(204,16)}")
    for ks in range(29, 32):
        a.wait_lgkm(f"cs{ks}")
        a(f"{MF} {v(204,16)}, {v(200,4)}, {v(WB+(ks&3)*4,4)}, {v(204,16)}")
    a("v_cvt_pk_bf16_f32 v221, v204, v204")
    a("v_and_b32 v221, 0xffff0000, v221")
    a("v_sub_f32 v222, v204, v221")
    a("v_cvt_pk_bf16_f32 v224, v221, v222")
    a("v_cvt_pk_bf16_f32 v225, v221, 0")
    a("v_mov_b32 v226, 0")
    a("v_mov_b32 v227, 0")
    a(f"s_lshl_b32 s74, s{sWAVE}, 10")
    a(f"s_add_u32 s74, s74, {LDS_XS}")
    a(f"v_add_u32 v220, s74, v{vL16}")
    a(f"ds_write_b128 v220, {v(224,4)}", alt=True)
    a("s_waitcnt lgkmcnt(0)", alt=True)
    a.label("L_cs_skip")
    a.lg_reset()
    a("s_barrier")
    a(f"v_add_u32 v220, {LDS_XS}, v{vL16}")
    for i, ar in enumerate((aCSK, aCSV, aCSQ)):
        a(f"ds_read_b128 {ag(ar,4)}, v220 offset:{i*1024}", tag="csr")
    a.wait_lgkm("csr")
    a("s_barrier")

def stats_from_sums(vS, vQ, vMean4, vC, vRstd, t):
    a(f"v_mul_f32 v{vS}, {1.0/512}, v{vS}".replace(str(1.0/512), "0x3b000000"))
    a(f"v_mul_f32 v{vQ}, 0x3b000000, v{vQ}")
    a(f"v_fma_f32 v{vQ}, -v{vS}, v{vS}, v{vQ}")
    a(f"v_max_f32 v{vQ}, 0, v{vQ}")
    a(f"v_add_f32 v{vQ}, 0x3727c5ac, v{vQ}")
    a(f"v_rsq_f32 v{vRstd}, v{vQ}")
    a(f"v_mul_f32 v{vC}, {LOG2E:#x}, v{vRstd}")
    a(f"v_sub_f32 v{t}, 0, v{vS}")
    a(f"v_cvt_pk_bf16_f32 v{vMean4}, v{t}, v{t}")
    a(f"v_and_b32 v{t+1}, 0xffff0000, v{vMean4}")
    a(f"v_sub_f32 v{t+1}, v{t}, v{t+1}")
    a(f"v_cvt_pk_bf16_f32 v{vMean4+1}, v{t+1}, 0")
    a(f"v_cndmask_b32 v{vMean4}, 0, v{vMean4}, s[{sLO32}:{sLO32+1}]")
    a(f"v_cndmask_b32 v{vMean4+1}, 0, v{vMean4+1}, s[{sLO32}:{sLO32+1}]")
    a(f"v_mov_b32 v{vMean4+2}, 0")
    a(f"v_mov_b32 v{vMean4+3}, 0")

def xhalf_sum(r, t):
    a(f"v_mov_b32 v{t}, v{r}")
    a(f"v_permlane32_swap_b32 v{r}, v{t}")
    a(f"v_add_f32 v{r}, v{r}, v{t}")

def softmax2(p, c, out, t):
    for h in range(2):
        P = p + 8 * h
        M, m, A, B = t, t + 1, t + 2, t + 3
        E = t + 4
        a(f"v_max3_f32 v{M}, v{P}, v{P+1}, v{P+2}")
        a(f"v_min3_f32 v{m}, v{P}, v{P+1}, v{P+2}")
        a(f"v_max3_f32 v{M}, v{M}, v{P+3}, v{P+4}")
        a(f"v_min3_f32 v{m}, v{m}, v{P+3}, v{P+4}")
        a(f"v_max3_f32 v{M}, v{M}, v{P+5}, v{P+6}")
        a(f"v_min3_f32 v{m}, v{m}, v{P+5}, v{P+6}")
        a(f"v_max_f32 v{M}, v{M}, v{P+7}")
        a(f"v_min_f32 v{m}, v{m}, v{P+7}")
        a(f"v_sub_f32 v{m}, 0, v{m}")
        a(f"v_permlane32_swap_b32 v{M}, v{m}")
        a(f"v_max_f32 v{M}, v{M}, v{m}")
        a(f"v_mov_b32 v{m}, v{M}")
        a(f"v_permlane32_swap_b32 v{M}, v{m}")
        a(f"v_mul_f32 v{M}, v{M}, v{c}")
        a(f"v_mul_f32 v{m}, v{m}, v{c}")
        for i in range(8):
            a(f"v_fma_f32 v{E+i}, -v{P+i}, v{c}, -v{m}")
            a(f"v_fma_f32 v{P+i}, v{P+i}, v{c}, -v{M}")
        for i in range(8):
            a(f"v_exp_f32 v{P+i}, v{P+i}")
            a(f"v_exp_f32 v{E+i}, v{E+i}")
        a(f"v_add_f32 v{A}, v{P}, v{P+1}")
        a(f"v_add_f32 v{B}, v{E}, v{E+1}")
        for i in range(2, 8):
            a(f"v_add_f32 v{A}, v{A}, v{P+i}")
            a(f"v_add_f32 v{B}, v{B}, v{E+i}")
        a(f"v_permlane32_swap_b32 v{A}, v{B}")
        a(f"v_add_f32 v{A}, v{A}, v{B}")
        a(f"v_rcp_f32 v{A}, v{A}")
        a(f"v_mov_b32 v{B}, v{A}")
        a(f"v_permlane32_swap_b32 v{A}, v{B}")
        for i in range(8):
            a(f"v_mul_f32 v{P+i}, v{P+i}, v{A}")
            a(f"v_mul_f32 v{E+i}, v{E+i}, v{B}")
        for i in range(4):
            a(f"v_cvt_pk_bf16_f32 v{out+8*h+i}, v{P+2*i}, v{P+2*i+1}")
            a(f"v_cvt_pk_bf16_f32 v{out+8*h+4+i}, v{E+2*i}, v{E+2*i+1}")

def phi_of(acc, cs_a, mean4, c, out, kb, pk, t):
    a(f"{MF} {v(acc,16)}, {ag(cs_a,4)}, {v(mean4,4)}, {v(acc,16)}")
    for i in range(8):
        a(f"v_cvt_pk_bf16_f32 v{kb+i}, v{acc+2*i}, v{acc+2*i+1}")
    a(f"{MF} {v(pk,16)}, {ag(aWPHI,4)}, {v(kb,4)}, 0")
    a(f"{MF} {v(pk,16)}, {ag(aWPHI+4,4)}, {v(kb+4,4)}, {v(pk,16)}")
    softmax2(pk, c, out, t)

LDS_SCR = 0
LDS_WO = 98304
LDS_W1A = 32768
LDS_W1B = 98304
LDS_RED = 98304

def dump_regs(r, n, slot):
    a(f"s_lshl_b32 s74, s2, 2")
    a(f"s_add_u32 s74, s74, s{sWAVE}")
    a(f"s_lshl_b32 s74, s74, 15")
    a(f"s_add_u32 s74, s74, {WS_DBG + slot*4096}")
    a(f"v_lshlrev_b32 v239, 2, v{vLANE}")
    for i in range(n):
        a(f"buffer_store_dword v{r+i}, v239, {srd(S_WS)}, s74 offen offset:{i*256}")
    a("s_waitcnt vmcnt(0)")

def get_tag():
    lab = a.newlabel("L_tag")
    a("v_mov_b32 v238, 0")
    a(f"s_mov_b32 s{sSPIN}, 0")
    a.label(lab)
    a(f"buffer_load_dwordx2 {v(236,2)}, v238, {srd(S_DBG)}, 0 offen sc0 sc1", alt=True)
    a("s_waitcnt vmcnt(0)")
    a(f"v_readfirstlane_b32 s{sTAGLO}, v236")
    a(f"v_readfirstlane_b32 s{sTAGHI}, v237")
    a(f"s_add_u32 s{sSPIN}, s{sSPIN}, 1")
    a(f"s_cmp_gt_u32 s{sSPIN}, 0x40000")
    a(f"s_cbranch_scc1 {lab}_x")
    a(f"s_cmp_eq_u32 s{sTAGLO}, 0")
    a(f"s_cbranch_scc1 {lab}")
    a.label(lab + "_x")
    a.vm_reset()

def poll(soff_expr_sgpr, code, mask_lo, mask_hi):
    lab = a.newlabel("L_poll")
    a(f"s_or_b32 s70, s{sTAGLO}, {code}")
    a(f"s_mov_b32 s68, {mask_lo}" if not str(mask_lo).startswith("s") else f"s_mov_b32 s68, {mask_lo}")
    a(f"s_mov_b32 s69, {mask_hi}")
    a(f"s_mov_b32 s{sSPIN}, 0")
    a.label(lab)
    a(f"buffer_load_dwordx2 {v(236,2)}, v{vL8}, {srd(S_WS)}, s{soff_expr_sgpr} offen sc1", alt=True)
    a(f"s_add_u32 s{sSPIN}, s{sSPIN}, 1")
    a(f"s_cmp_gt_u32 s{sSPIN}, 0x40000")
    a(f"s_cbranch_scc1 {lab}_x")
    a("s_waitcnt vmcnt(0)")
    a("v_subrev_u32 v236, s70, v236")
    a(f"v_cmp_ge_u32 vcc, {15-code}, v236")
    a(f"v_cmp_eq_u32 s[66:67], s{sTAGHI}, v237")
    a("s_nop 0")
    a("s_and_b64 vcc, vcc, s[66:67]")
    a("s_andn2_b64 s[66:67], s[68:69], vcc")
    a(f"s_cbranch_scc1 {lab}")
    a.label(lab + "_x")
    a("s_waitcnt vmcnt(0)")
    a.vm_reset()

def flag_store(soff_sgpr, code, local):
    a(f"s_or_b32 s70, s{sTAGLO}, {code}")
    a("v_mov_b32 v236, s70")
    a(f"v_mov_b32 v237, s{sTAGHI}")
    a("v_mov_b32 v238, 0")
    a("s_mov_b64 exec, 1")
    if local:
        lab = a.newlabel("L_fs")
        a(f"s_cmp_eq_u32 s{sMODE}, 0")
        a(f"s_cbranch_scc1 {lab}")
        a(f"buffer_store_dwordx2 {v(236,2)}, v238, {srd(S_WS)}, s{soff_sgpr} offen")
        a(f"s_branch {lab}_e")
        a.label(lab)
        a(f"buffer_store_dwordx2 {v(236,2)}, v238, {srd(S_WS)}, s{soff_sgpr} offen sc0 sc1", alt=True)
        a.label(lab + "_e")
    else:
        a(f"buffer_store_dwordx2 {v(236,2)}, v238, {srd(S_WS)}, s{soff_sgpr} offen sc0 sc1")
    a("s_mov_b64 exec, -1")

def p1(layer):
    XB = 0
    MEAN, C_T, RSTD = 228, 232, 233
    if layer == 1:
        p1_layer1_head()
    if layer == 0:
        load_wphi()
        x_stage_dma(0)
        dma_wqkv_raw()
        consts()
        fix_wphi()
        x_stage_read(0)
        a.wait_lgkm("xr0")
        x_stage_dma(1)
        a("v_mov_b32 v230, 0"); a("v_mov_b32 v231, 0"); a("v_mov_b32 v234, 0x3f803f80")
        for r in range(64):
            a(f"v_dot2c_f32_bf16 v230, v{r}, v234")
            a(f"v_dot2c_f32_bf16 v231, v{r}, v{r}")
        x_stage_read(1)
        a.wait_lgkm("xr1")
        for r in range(64, 128):
            a(f"v_dot2c_f32_bf16 v230, v{r}, v234")
            a(f"v_dot2c_f32_bf16 v231, v{r}, v{r}")
        xhalf_sum(230, 235); xhalf_sum(231, 235)
        stats_from_sums(230, 231, MEAN, C_T, RSTD, 234)
        a("s_waitcnt vmcnt(0)")
        a("s_barrier")
        p1_colsum()
        dma_slab(S_WO, vDMA1K, 1024, ("nt64", 128), LDS_WO, "wo")
    zero_acc(ACC_K); zero_acc(ACC_V)
    def issue(ks):
        Tk, s = ks >> 1, ks & 1
        b = WB + (ks % 3) * 8
        off = (32 * Tk + 8 * s) * 64
        trW(b, vTR64, LDS_K + off, f"kv{ks}")
        trW(b + 4, vTR64, LDS_V + off, f"kv{ks}")
    issue(0); issue(1)
    for ks in range(32):
        if ks + 2 < 32: issue(ks + 2)
        a.wait_lgkm(f"kv{ks}")
        b = WB + (ks % 3) * 8
        a(f"{MF} {v(ACC_K,16)}, {v(b,4)}, {v(XB+4*ks,4)}, {v(ACC_K,16)}")
        a(f"{MF} {v(ACC_V,16)}, {v(XB+4*ks,4)}, {v(b+4,4)}, {v(ACC_V,16)}")
    a("s_barrier")
    a(f"s_lshl_b32 s74, s{sWAVE}, 7")
    a(f"s_add_u32 s74, s74, {LDS_SCR + 20480}")
    a(f"v_and_b32 v234, 31, v{vLANE}")
    a("v_lshlrev_b32 v234, 2, v234")
    a("v_add_u32 v234, s74, v234")
    a(f"ds_write_b32 v234, v{RSTD}")
    a(f"v_add_u32 v235, s74, v{vRS4}")
    PHI, KB, PK, T = 160, 176, 184, 200
    phi_of(ACC_K, aCSK, MEAN, C_T, PHI, KB, PK, T)
    a(f"{MF} {v(ACC_V,16)}, {v(MEAN,4)}, {ag(aCSV,4)}, {v(ACC_V,16)}")
    RS = 184
    for q in range(4):
        a(f"ds_read_b128 {v(RS+4*q,4)}, v235 offset:{q*32}", tag="rs")
    a.wait_lgkm("rs")
    for i in range(16):
        a(f"v_mul_f32 v{ACC_V+i}, v{ACC_V+i}, v{RS+i}")
    VB0, VB1 = 176, 200
    for i in range(8):
        a(f"v_cvt_pk_bf16_f32 v{VB0+i}, v{ACC_V+2*i}, v{ACC_V+2*i+1}")
    for i in range(8):
        a(f"v_cndmask_b32 v{VB1+i}, v{VB0+i}, 0, s[{sC16}:{sC16+1}]")
        a(f"v_cndmask_b32 v{VB0+i}, 0, v{VB0+i}, s[{sC16}:{sC16+1}]")
    D2 = (128, 144)
    for h in range(2):
        a(f"{MF} {v(D2[h],16)}, {v(PHI+8*h,4)}, {ag(aIP,4)}, 0")
        a(f"{MF} {v(D2[h],16)}, {v(PHI+8*h+4,4)}, {ag(aIM,4)}, {v(D2[h],16)}")
    PKT = 184
    ZZ = (208, 209)
    for h in range(2):
        d = D2[h]
        a(f"v_add_f32 v{ZZ[h]}, v{d}, v{d+1}")
        for i in range(2, 16): a(f"v_add_f32 v{ZZ[h]}, v{ZZ[h]}, v{d+i}")
        for i in range(8):
            a(f"v_cvt_pk_bf16_f32 v{PKT+8*h+i}, v{d+2*i}, v{d+2*i+1}")
    a(f"v_permlane32_swap_b32 v{ZZ[0]}, v{ZZ[1]}")
    a(f"v_add_f32 v{ZZ[0]}, v{ZZ[0]}, v{ZZ[1]}")
    KV = 128
    a(f"{MF} {v(KV,16)}, {v(PKT,4)}, {v(VB0,4)}, 0")
    a(f"{MF} {v(KV,16)}, {v(PKT+4,4)}, {v(VB0+4,4)}, {v(KV,16)}")
    a(f"{MF} {v(KV,16)}, {v(PKT+8,4)}, {v(VB1,4)}, {v(KV,16)}")
    a(f"{MF} {v(KV,16)}, {v(PKT+12,4)}, {v(VB1+4,4)}, {v(KV,16)}")
    a(f"s_lshl_b32 s74, s{sWAVE}, 12")
    a(f"s_add_u32 s74, s74, {LDS_SCR}")
    a(f"v_add_u32 v210, s74, v{vL16}")
    for q in range(4):
        a(f"ds_write_b128 v210, {v(KV+4*q,4)} offset:{q*1024}")
    a(f"s_lshl_b32 s74, s{sWAVE}, 8")
    a(f"s_add_u32 s74, s74, {LDS_SCR+16384}")
    a(f"v_lshlrev_b32 v211, 2, v{vLANE}")
    a("v_add_u32 v212, s74, v211")
    a(f"ds_write_b32 v212, v{ZZ[0]}")
    a("s_waitcnt lgkmcnt(0)")
    a("s_barrier")
    a(f"s_lshl_b32 s74, s{sWAVE}, 10")
    a(f"s_add_u32 s74, s74, {LDS_SCR}")
    a(f"v_add_u32 v210, s74, v{vL16}")
    for w in range(4):
        a(f"ds_read_b128 {v(128+4*w,4)}, v210 offset:{w*4096}", tag="kvr")
    a(f"v_add_u32 v212, {LDS_SCR+16384}, v211")
    for w in range(4):
        a(f"ds_read_b32 v{144+w}, v212 offset:{w*256}", tag="kvr")
    a.wait_lgkm("kvr")
    for i in range(4):
        a(f"v_add_f32 v{128+i}, v{128+i}, v{132+i}")
        a(f"v_add_f32 v{136+i}, v{136+i}, v{140+i}")
    for i in range(4):
        a(f"v_add_f32 v{128+i}, v{128+i}, v{136+i}")
    a("v_add_f32 v144, v144, v145"); a("v_add_f32 v146, v146, v147"); a("v_add_f32 v144, v144, v146")
    a(f"s_lshl_b32 s74, s{sIDX}, 4")
    a(f"s_add_u32 s74, s74, s{sTEAM}")
    a(f"s_lshl_b32 s75, s74, 12")
    a(f"s_lshl_b32 s76, s{sWAVE}, 10")
    a("s_add_u32 s75, s75, s76")
    a(f"s_add_u32 s75, s75, {WS_KVP + layer*0x100000}")
    a(f"buffer_store_dwordx4 {v(128,4)}, v{vL16}, {srd(S_WS)}, s75 offen sc0 sc1", tag="kvst")
    a(f"s_lshl_b32 s75, s74, 8")
    a(f"s_add_u32 s75, s75, {WS_KVZ + layer*0x10000}")
    a(f"s_cmp_eq_u32 s{sWAVE}, 0")
    a("s_cbranch_scc0 L_noz%d" % layer)
    a(f"buffer_store_dword v144, v211, {srd(S_WS)}, s75 offen sc0 sc1", alt=True)
    a.label("L_noz%d" % layer)
    if layer == 0:
        get_tag()
    a("s_waitcnt vmcnt(0)")
    a(f"s_lshl_b32 s75, s74, 2")
    a(f"s_add_u32 s75, s75, s{sWAVE}")
    a("s_lshl_b32 s75, s75, 3")
    a(f"s_add_u32 s75, s75, {WS_KVF}")
    flag_store(75, 1 + layer, False)
    if layer == 0:
        a(f"s_cmp_eq_u32 s{sWAVE}, 0")
        a("s_cbranch_scc0 L_nohello")
        a("s_getreg_b32 s74, hwreg(HW_REG_XCC_ID)")
        a("s_and_b32 s74, s74, 7")
        a("s_lshl_b32 s74, s74, 4")
        a(f"s_or_b32 s74, s74, s{sTAGLO}")
        a("v_mov_b32 v236, s74")
        a(f"v_mov_b32 v237, s{sTAGHI}")
        a("v_mov_b32 v238, 0")
        a(f"s_lshl_b32 s75, s{sTEAM}, 4")
        a(f"s_add_u32 s75, s75, s{sIDX}")
        a("s_lshl_b32 s75, s75, 3")
        a(f"s_add_u32 s75, s75, {WS_HELLO}")
        a("s_mov_b64 exec, 1")
        a(f"buffer_store_dwordx2 {v(236,2)}, v238, {srd(S_WS)}, s75 offen sc0 sc1", alt=True)
        a("s_mov_b64 exec, -1")
        a.label("L_nohello")
    zero_acc(ACC_Q)
    def issueq(ks):
        Tk, s = ks >> 1, ks & 1
        trW(WB + (ks % 4) * 4, vTR64Q, (32 * Tk + 8 * s) * 64, f"q{ks}")
    issueq(0); issueq(1); issueq(2)
    for ks in range(32):
        if ks + 3 < 32: issueq(ks + 3)
        a.wait_lgkm(f"q{ks}")
        a(f"{MF} {v(ACC_Q,16)}, {v(WB+(ks%4)*4,4)}, {v(XB+4*ks,4)}, {v(ACC_Q,16)}")
    phi_of(ACC_Q, aCSQ, MEAN, C_T, 128, 176, 184, 200)


def dma_slab(S, vdma, rowstride, colsel, lds_base, tag, rows=512, col_extra=0):
    if colsel[0] == "nt64":
        a(f"s_and_b32 s74, s{sIDX}, 7")
        a(f"s_lshl_b32 s74, s74, 7")
    else:
        a(f"s_lshl_b32 s74, s{sIDX}, 8")
    a(f"s_mul_i32 s75, s{sWAVE}, {8*rowstride}")
    a("s_add_u32 s74, s74, s75")
    a(f"s_lshl_b32 s75, s{sWAVE}, 10")
    for n in range(rows // 32):
        a(f"s_add_u32 m0, s75, {lds_base + n*4096}")
        a(f"s_add_u32 s76, s74, {n*32*rowstride + col_extra}")
        a(f"buffer_load_dwordx4 v{vdma}, {srd(S)}, s76 offen lds", tag=tag)

def team_flag_off(dst):
    a(f"s_lshl_b32 s{dst}, s{sIDX}, 2")
    a(f"s_add_u32 s{dst}, s{dst}, s{sWAVE}")
    a(f"s_lshl_b32 s{dst}, s{dst}, 3")
    a(f"s_lshl_b32 s74, s{sTEAM}, 9")
    a(f"s_add_u32 s{dst}, s{dst}, s74")
    a(f"s_add_u32 s{dst}, s{dst}, {WS_FLAG}")

def team_poll(code, mlo, mhi):
    a(f"s_lshl_b32 s71, s{sTEAM}, 9")
    a(f"s_add_u32 s71, s71, {WS_FLAG}")
    poll(71, code, mlo, mhi)

def local_stores(stores):
    lab = a.newlabel("L_st")
    a(f"s_cmp_eq_u32 s{sMODE}, 0")
    a(f"s_cbranch_scc1 {lab}")
    for t in stores: a(t)
    a(f"s_branch {lab}_e")
    a.label(lab)
    for t in stores: a(t + " sc0 sc1", alt=True)
    a.label(lab + "_e")

def get_mode():
    lab = a.newlabel("L_hello")
    a(f"s_lshl_b32 s71, s{sTEAM}, 7")
    a(f"s_add_u32 s71, s71, {WS_HELLO}")
    a(f"s_mov_b32 s{sSPIN}, 0")
    a.label(lab)
    a(f"buffer_load_dwordx2 {v(236,2)}, v{vL8}, {srd(S_WS)}, s71 offen sc1", alt=True)
    a(f"s_add_u32 s{sSPIN}, s{sSPIN}, 1")
    a(f"s_cmp_gt_u32 s{sSPIN}, 0x40000")
    a(f"s_cbranch_scc1 {lab}_x")
    a("s_waitcnt vmcnt(0)")
    a("v_and_b32 v238, 0xffffff8f, v236")
    a(f"v_cmp_eq_u32 vcc, s{sTAGLO}, v238")
    a(f"v_cmp_eq_u32 s[66:67], s{sTAGHI}, v237")
    a("s_nop 0")
    a("s_and_b64 vcc, vcc, s[66:67]")
    a("s_mov_b64 s[68:69], 0xffff")
    a("s_andn2_b64 s[66:67], s[68:69], vcc")
    a(f"s_cbranch_scc1 {lab}")
    a.label(lab + "_x")
    a("s_waitcnt vmcnt(0)")
    a.vm_reset()
    a("v_readfirstlane_b32 s66, v236")
    a("v_cmp_ne_u32 vcc, s66, v236")
    a("s_nop 0")
    a("s_and_b32 s66, vcc_lo, 0xffff")
    a("s_cmp_eq_u32 s66, 0")
    a(f"s_cselect_b32 s{sMODE}, 1, 0")
    if FORCE_SLOW: a(f"s_mov_b32 s{sMODE}, 0")

def pack_w2():
    lab = a.newlabel("L_pack")
    a(f"s_lshl_b32 s60, s2, 2")
    a(f"s_add_u32 s60, s60, s{sWAVE}")
    a("s_cmp_ge_u32 s60, 448")
    a(f"s_cbranch_scc1 {lab}")
    a("s_and_b32 s61, s60, 7")
    a("s_lshr_b32 s62, s60, 3")
    a("s_lshl_b32 s74, s61, 7")
    a("s_lshl_b32 s75, s62, 15")
    a("s_add_u32 s74, s74, s75")
    a(f"s_lshl_b32 s63, s{sWAVE}, 12")
    a(f"s_add_u32 s63, s63, {LDS_SCR+16384}")
    for n in range(4):
        a(f"s_add_u32 m0, s63, {n*1024}")
        a(f"s_add_u32 s76, s74, {n*8*1024}")
        a(f"buffer_load_dwordx4 v{vDMA1K}, {srd(S_W2)}, s76 offen lds", alt=True)
    a(f"v_add_u32 v0, s63, v{vTRS0}")
    a(f"v_add_u32 v1, s63, v{vTRS1}")
    a("s_waitcnt vmcnt(0)")
    for nt in range(2):
        for sx in range(2):
            r = 4 + (nt*2+sx)*4
            a(f"ds_read_b64_tr_b16 {v(r,2)}, v{nt} offset:{8*sx*128}", alt=True)
            a(f"ds_read_b64_tr_b16 {v(r+2,2)}, v{nt} offset:{8*sx*128+512}", alt=True)
    a("s_waitcnt lgkmcnt(0)")
    a("s_mul_i32 s74, s61, 224")
    a("s_lshl_b32 s75, s62, 1")
    a("s_add_u32 s74, s74, s75")
    a("s_lshl_b32 s74, s74, 10")
    a(f"s_add_u32 s74, s74, {WS_W2P}")
    for nt in range(2):
        for sx in range(2):
            r = 4 + (nt*2+sx)*4
            a(f"s_add_u32 s76, s74, {(nt*112+sx)*1024}")
            a(f"buffer_store_dwordx4 {v(r,4)}, v{vL16}, {srd(S_WS)}, s76 offen sc0 sc1", alt=True)
    a("s_waitcnt vmcnt(0)")
    a("s_lshl_b32 s75, s61, 6")
    a("s_add_u32 s75, s75, s62")
    a("s_lshl_b32 s75, s75, 3")
    a(f"s_add_u32 s75, s75, {WS_PKF}")
    a.vm_reset_hint = True
    a(f"s_or_b32 s70, s{sTAGLO}, 1")
    a("v_mov_b32 v236, s70")
    a(f"v_mov_b32 v237, s{sTAGHI}")
    a("v_mov_b32 v238, 0")
    a("s_mov_b64 exec, 1")
    a(f"buffer_store_dwordx2 {v(236,2)}, v238, {srd(S_WS)}, s75 offen sc0 sc1", alt=True)
    a("s_mov_b64 exec, -1")
    a("s_waitcnt vmcnt(0)")
    a.label(lab)
    a.vm_reset(); a.lg_reset()

def load_w2():
    a(f"s_and_b32 s60, s{sIDX}, 7")
    a("s_lshl_b32 s71, s60, 9")
    a(f"s_add_u32 s71, s71, {WS_PKF}")
    a(f"s_mul_i32 s61, s{sWAVE}, 14")
    a("s_mov_b64 s[62:63], 0x3fff")
    a("s_lshl_b64 s[62:63], s[62:63], s61")
    poll(71, 1, "s62", "s63")
    a(f"s_and_b32 s61, s{sWAVE}, 1")
    a("s_lshl_b32 s62, s60, 1")
    a("s_or_b32 s63, s62, s61")
    a("s_xor_b32 s62, s63, 1")
    a(f"s_mul_i32 s64, s{sWAVE}, 28")
    for slot, sr in ((0, 63), (1, 62)):
        a(f"s_mul_i32 s65, s{sr}, 112")
        a("s_add_u32 s65, s65, s64")
        a("s_lshl_b32 s65, s65, 10")
        a(f"s_add_u32 s65, s65, {WS_W2P}")
        for ks in range(28):
            if ks % 4 == 0 and ks: a("s_add_u32 s65, s65, 4096")
            r = (ks*2+slot)*4
            a(f"buffer_load_dwordx4 {ag(r,4)}, v{vL16}, {srd(S_WS)}, s65 offen offset:{(ks%4)*1024} sc1", tag="w2")

def tile_base(dst, tile_bytes, extra_sgpr_tt):
    a(f"s_lshl_b32 s{dst}, s{sTEAM}, 2")
    a(f"s_add_u32 s{dst}, s{dst}, s{extra_sgpr_tt}")
    a(f"s_mul_i32 s{dst}, s{dst}, {tile_bytes}")

def p15(layer):
    PHQ = 128
    a(f"s_lshl_b32 s71, s{sIDX}, 9")
    a(f"s_add_u32 s71, s71, {WS_KVF}")
    a(f"s_lshl_b32 s62, 0x11111111, s{sWAVE}")
    poll(71, 1 + layer, "s62", "s62")
    a(f"s_lshl_b32 s74, s{sIDX}, 16")
    a(f"s_lshl_b32 s75, s{sWAVE}, 10")
    a("s_add_u32 s74, s74, s75")
    a(f"s_add_u32 s74, s74, {WS_KVP + layer*0x100000}")
    for t in range(16):
        a(f"buffer_load_dwordx4 {v(4*t,4)}, v{vL16}, {srd(S_WS)}, s74 offen sc1", tag="kvl")
        if t < 15: a("s_add_u32 s74, s74, 4096")
    labz = a.newlabel("L_z")
    a(f"v_lshlrev_b32 v100, 2, v{vLANE}")
    a(f"s_cmp_eq_u32 s{sWAVE}, 0")
    a(f"s_cbranch_scc0 {labz}")
    a(f"s_lshl_b32 s74, s{sIDX}, 12")
    a(f"s_add_u32 s74, s74, {WS_KVZ + layer*0x10000}")
    for t in range(16):
        a(f"buffer_load_dword v{64+t}, v100, {srd(S_WS)}, s74 offen offset:{t*256} sc1", alt=True)
    a("s_waitcnt vmcnt(0)", alt=True)
    for st in (8, 4, 2, 1):
        for i in range(st): a(f"v_add_f32 v{64+i}, v{64+i}, v{64+i+st}")
    L = vLANE
    a(f"v_bfe_u32 v80, v{L}, 4, 2")
    a(f"v_bfe_u32 v81, v{L}, 2, 1")
    a("v_lshl_add_u32 v80, v80, 1, v81")
    a(f"v_and_b32 v81, 3, v{L}")
    a(f"v_bfe_u32 v82, v{L}, 3, 1")
    a("v_lshl_add_u32 v81, v82, 2, v81")
    a("v_lshl_add_u32 v80, v80, 3, v81")
    a("v_lshlrev_b32 v80, 1, v80")
    a("v_cvt_pk_bf16_f32 v64, v64, v64")
    a(f"ds_write_b16 v80, v64 offset:{LDS_SCR+4096}", alt=True)
    a.label(labz)
    a.wait_vm("kvl")
    for st in (8, 4, 2, 1):
        for i in range(st):
            for e in range(4): a(f"v_add_f32 v{4*i+e}, v{4*i+e}, v{4*(i+st)+e}")
    a("v_cvt_pk_bf16_f32 v4, v0, v1")
    a("v_cvt_pk_bf16_f32 v5, v2, v3")
    a(f"s_lshl_b32 s74, s{sWAVE}, 9")
    a(f"v_add_u32 v6, s74, v{vL8}")
    a(f"ds_write_b64 v6, {v(4,2)} offset:{LDS_SCR}")
    a("s_waitcnt lgkmcnt(0)")
    a("s_barrier")
    KVB, ZF = 8, 16
    for w in range(4):
        a(f"ds_read_b64 {v(KVB+2*w,2)}, v{vL8} offset:{LDS_SCR + w*512}", tag="kvb")
    for hp_ in range(4):
        a(f"ds_read_b128 {v(ZF+4*hp_,4)}, v{vRS4} offset:{LDS_SCR+4096+hp_*32}", tag="kvb")
    if layer == 0:
        get_mode()
        a.lg_reset()
        a("s_waitcnt lgkmcnt(0)")
    a.wait_lgkm("kvb")
    AO = 32
    m = f"s[{sC16}:{sC16+1}]"
    for part in range(2):
        for i in range(4):
            a(f"v_cndmask_b32 v{AO+part*4+i}, v{ZF+part*4+i}, v{KVB+part*4+i}, {m}")
            a(f"v_cndmask_b32 v{AO+8+part*4+i}, v{KVB+part*4+i}, v{ZF+8+part*4+i}, {m}")
    N0, N1 = 48, 64
    a(f"{MF} {v(N0,16)}, {v(AO,4)}, {v(PHQ,4)}, 0")
    a(f"{MF} {v(N1,16)}, {v(AO+8,4)}, {v(PHQ+8,4)}, 0")
    a(f"{MF} {v(N0,16)}, {v(AO+4,4)}, {v(PHQ+4,4)}, {v(N0,16)}")
    a(f"{MF} {v(N1,16)}, {v(AO+12,4)}, {v(PHQ+12,4)}, {v(N1,16)}")
    a(f"v_add_f32 v80, 0x358637bd, v{N0+8}")
    a(f"v_add_f32 v81, 0x358637bd, v{N1}")
    a("v_rcp_f32 v80, v80"); a("v_rcp_f32 v81, v81")
    for i in range(8):
        a(f"v_mul_f32 v{N0+i}, v{N0+i}, v80")
        a(f"v_mul_f32 v{N1+8+i}, v{N1+8+i}, v81")
    for i in range(4):
        a(f"v_cvt_pk_bf16_f32 v{84+i}, v{N0+2*i}, v{N0+2*i+1}")
        a(f"v_cvt_pk_bf16_f32 v{88+i}, v{N1+8+2*i}, v{N1+8+2*i+1}")
    tile_base(75, 112*1024, sWAVE)
    a(f"s_lshl_b32 s76, s{sIDX}, 11")
    a("s_add_u32 s75, s75, s76")
    a(f"s_add_u32 s75, s75, {WS_H}")
    local_stores([f"buffer_store_dwordx4 {v(84,4)}, v{vL16}, {srd(S_WS)}, s75 offen",
                  f"buffer_store_dwordx4 {v(88,4)}, v{vL16}, {srd(S_WS)}, s75 offen offset:1024"])
    team_flag_off(75)
    a("s_waitcnt vmcnt(0)")
    flag_store(75, 1 + 4*layer, True)

def make_R(dst, t):
    L = vLANE
    a(f"v_and_b32 v{t}, 3, v{L}")
    a(f"v_bfe_u32 v{t+1}, v{L}, 3, 1")
    a(f"v_lshl_add_u32 v{t}, v{t+1}, 2, v{t}")
    a(f"v_bfe_u32 v{t+1}, v{L}, 2, 1")
    a(f"v_lshrrev_b32 v{t+2}, 5, v{L}")
    a(f"v_xor_b32 v{t+1}, v{t+1}, v{t+2}")
    a(f"v_lshl_add_u32 v{t}, v{t+1}, 3, v{t}")
    a(f"v_bfe_u32 v{t+1}, v{L}, 4, 1")
    a(f"v_lshl_add_u32 v{t+2}, v{t+1}, 3, v{t}")
    onehot(dst, t+2, t+3, t+4)
    a(f"v_xor_b32 v{t+1}, 1, v{t+1}")
    a(f"v_lshl_add_u32 v{t+2}, v{t+1}, 3, v{t}")
    onehot(dst+4, t+2, t+3, t+4)

def finish_tile(acc, R, RES, s_tt, s_nt32, layer_final, code, raw_out):
    a(f"{MF} {v(acc,16)}, {v(R,4)}, {v(RES,4)}, {v(acc,16)}")
    a(f"{MF} {v(acc,16)}, {v(R+4,4)}, {v(RES+4,4)}, {v(acc,16)}")
    O = 200
    if not raw_out:
        a(f"v_add_f32 v210, v{acc}, v{acc+1}")
        a(f"v_mul_f32 v211, v{acc}, v{acc}")
        a(f"v_fmac_f32 v211, v{acc+1}, v{acc+1}")
        for i in range(2, 16):
            a(f"v_add_f32 v210, v210, v{acc+i}")
            a(f"v_fmac_f32 v211, v{acc+i}, v{acc+i}")
        a("v_permlane32_swap_b32 v210, v211")
        a("v_add_f32 v210, v210, v211")
    for i in range(8):
        a(f"v_cvt_pk_bf16_f32 v{O+i}, v{acc+2*i}, v{acc+2*i+1}")
    if raw_out:
        tile_base(75, 32*1024, s_tt)
        a(f"s_lshl_b32 s76, s{s_nt32}, 6")
        a("s_add_u32 s75, s75, s76")
        a(f"v_and_b32 v212, 31, v{vLANE}")
        a("v_lshlrev_b32 v212, 10, v212")
        a(f"v_lshl_add_u32 v212, v{vRS4}, 1, v212")
        a(f"buffer_store_dwordx4 {v(O,4)}, v212, {srd(S_OUT)}, s75 offen")
        a(f"buffer_store_dwordx4 {v(O+4,4)}, v212, {srd(S_OUT)}, s75 offen offset:16")
        return
    tile_base(75, 32*1024, s_tt)
    a(f"s_lshl_b32 s76, s{s_nt32}, 11")
    a("s_add_u32 s75, s75, s76")
    a(f"s_add_u32 s75, s75, {WS_X}")
    tile_base(77, 4096, s_tt)
    a(f"s_bfe_u32 s76, s{s_nt32}, 0x20001")
    a("s_lshl_b32 s76, s76, 10")
    a("s_add_u32 s77, s77, s76")
    a(f"s_lshr_b32 s76, s{s_nt32}, 3")
    a("s_lshl_b32 s76, s76, 9")
    a("s_add_u32 s77, s77, s76")
    a(f"s_and_b32 s76, s{s_nt32}, 1")
    a("s_lshl_b32 s76, s76, 3")
    a("s_add_u32 s77, s77, s76")
    a(f"s_add_u32 s77, s77, {WS_STATS}")
    a(f"v_and_b32 v212, 31, v{vLANE}")
    a("v_lshlrev_b32 v212, 4, v212")
    a(f"v_lshrrev_b32 v213, 2, v{vRS4}")
    a("v_add_u32 v212, v212, v213")
    local_stores([f"buffer_store_dwordx4 {v(O,4)}, v{vL16}, {srd(S_WS)}, s75 offen",
                  f"buffer_store_dwordx4 {v(O+4,4)}, v{vL16}, {srd(S_WS)}, s75 offen offset:1024",
                  f"buffer_store_dword v210, v212, {srd(S_WS)}, s77 offen"])
    team_flag_off(75)
    a("s_waitcnt vmcnt(0)")
    flag_store(75, code, True)

def load_resid(RES, s_tt, s_nt32, raw):
    if raw:
        tile_base(75, 32*1024, s_tt)
        a(f"s_lshl_b32 s76, s{s_nt32}, 6")
        a("s_add_u32 s75, s75, s76")
        a(f"v_and_b32 v212, 31, v{vLANE}")
        a("v_lshlrev_b32 v212, 10, v212")
        a(f"v_lshl_add_u32 v212, v{vRS4}, 1, v212")
        a(f"buffer_load_dwordx4 {v(RES,4)}, v212, {srd(S_X)}, s75 offen", tag="res")
        a(f"buffer_load_dwordx4 {v(RES+4,4)}, v212, {srd(S_X)}, s75 offen offset:16", tag="res")
    else:
        tile_base(75, 32*1024, s_tt)
        a(f"s_lshl_b32 s76, s{s_nt32}, 11")
        a("s_add_u32 s75, s75, s76")
        a(f"s_add_u32 s75, s75, {WS_X}")
        a(f"buffer_load_dwordx4 {v(RES,4)}, v{vL16}, {srd(S_WS)}, s75 offen sc1", tag="res")
        a(f"buffer_load_dwordx4 {v(RES+4,4)}, v{vL16}, {srd(S_WS)}, s75 offen offset:1024 sc1", tag="res")

def p2(layer):
    sTT, sKH, sNT = 60, 61, 62
    a(f"s_lshr_b32 s{sTT}, s{sIDX}, 3")
    a(f"s_lshl_b32 s{sTT}, s{sTT}, 1")
    a(f"s_lshr_b32 s74, s{sWAVE}, 1")
    a(f"s_add_u32 s{sTT}, s{sTT}, s74")
    a(f"s_and_b32 s{sKH}, s{sWAVE}, 1")
    a(f"s_and_b32 s{sNT}, s{sIDX}, 7")
    a(f"s_lshl_b32 s{sNT}, s{sNT}, 1")
    a(f"s_add_u32 s{sNT}, s{sNT}, s{sKH}")
    R, RES = 160, 168
    make_R(R, 176)
    load_resid(RES, sTT, sNT, layer == 0)
    a(f"s_lshl_b32 s63, 0x11111111, s{sTT}")
    a(f"s_cmp_eq_u32 s{sKH}, 0")
    a("s_cselect_b32 s64, s63, 0")
    a("s_cselect_b32 s65, 0, s63")
    team_poll(1 + 4*layer, "s64", "s65")
    tile_base(75, 112*1024, sTT)
    a(f"s_lshl_b32 s76, s{sKH}, 14")
    a("s_add_u32 s75, s75, s76")
    a(f"s_add_u32 s75, s75, {WS_H}")
    for ks in range(16):
        if ks % 4 == 0 and ks: a("s_add_u32 s75, s75, 4096")
        a(f"buffer_load_dwordx4 {v(4*ks,4)}, v{vL16}, {srd(S_WS)}, s75 offen offset:{(ks%4)*1024} sc1", tag=f"o{ks}")
    a(f"s_lshl_b32 s76, s{sKH}, 15")
    a(f"s_add_u32 s76, s76, {LDS_WO}")
    a(f"s_cmp_eq_u32 s{sKH}, 0")
    a("s_cselect_b64 vcc, -1, 0")
    a(f"v_cndmask_b32 v180, v{vTRO1}, v{vTRO0}, vcc")
    a(f"v_cndmask_b32 v181, v{vTRO0}, v{vTRO1}, vcc")
    a("v_add_u32 v180, s76, v180")
    a("v_add_u32 v181, s76, v181")
    a("s_barrier")
    AK, AS = 128, 144
    zero_acc(AK); zero_acc(AS)
    WBF = 64
    def issue(ks):
        b = WBF + (ks % 3) * 8
        for k2, base in ((0, 180), (1, 181)):
            a(f"ds_read_b64_tr_b16 {v(b+4*k2,2)}, v{base} offset:{ks*2048}", tag=f"w{ks}")
            a(f"ds_read_b64_tr_b16 {v(b+4*k2+2,2)}, v{base} offset:{ks*2048+1024}", tag=f"w{ks}")
    issue(0); issue(1)
    for ks in range(16):
        if ks + 2 < 16: issue(ks + 2)
        a.wait_vm(f"o{ks}")
        a.wait_lgkm(f"w{ks}")
        b = WBF + (ks % 3) * 8
        a(f"{MF} {v(AK,16)}, {v(b,4)}, {v(4*ks,4)}, {v(AK,16)}")
        a(f"{MF} {v(AS,16)}, {v(b+4,4)}, {v(4*ks,4)}, {v(AS,16)}")
    a(f"s_lshl_b32 s74, s{sWAVE}, 12")
    a(f"s_add_u32 s75, s74, {LDS_SCR}")
    a(f"v_add_u32 v182, s75, v{vL16}")
    for q in range(4): a(f"ds_write_b128 v182, {v(AS+4*q,4)} offset:{q*1024}")
    a("s_xor_b32 s74, s74, 4096")
    a(f"s_add_u32 s75, s74, {LDS_SCR}")
    a(f"v_add_u32 v182, s75, v{vL16}")
    a("s_waitcnt lgkmcnt(0)")
    a("s_barrier")
    for q in range(4): a(f"ds_read_b128 {v(AS+4*q,4)}, v182 offset:{q*1024}", tag="ex")
    a.wait_lgkm("ex")
    for i in range(16): a(f"v_add_f32 v{AK+i}, v{AK+i}, v{AS+i}")
    finish_tile(AK, R, RES, sTT, sNT, False, 2 + 4*layer, False)

def p3(layer):
    lab_skip = f"L_p3skip{layer}"
    a(f"s_cmp_ge_u32 s{sIDX}, 14")
    a(f"s_cbranch_scc1 {lab_skip}")
    dma_slab(S_W1, vDMAW1, 3584, ("ft", 256), LDS_W1B, "w1b", col_extra=128)
    a(f"s_and_b32 s74, s{sWAVE}, 1")
    a("s_lshl_b32 s74, s74, 1")
    a("s_lshl_b32 s63, 0x33333333, s74")
    a(f"s_cmp_lt_u32 s{sWAVE}, 2")
    a("s_cselect_b32 s64, s63, 0")
    a("s_cselect_b32 s65, 0, s63")
    team_poll(2 + 4*layer, "s64", "s65")
    tile_base(75, 32*1024, sWAVE)
    a(f"s_add_u32 s75, s75, {WS_X}")
    tile_base(77, 4096, sWAVE)
    a(f"s_add_u32 s77, s77, {WS_STATS}")
    ST = 200
    for q in range(4):
        a(f"buffer_load_dwordx4 {v(ST+4*q,4)}, v{vL16}, {srd(S_WS)}, s77 offen offset:{q*1024} sc1", tag="st")
    for ks in range(32):
        if ks % 4 == 0 and ks: a("s_add_u32 s75, s75, 4096")
        a(f"buffer_load_dwordx4 {v(4*ks,4)}, v{vL16}, {srd(S_WS)}, s75 offen offset:{(ks%4)*1024} sc1", tag=f"x{ks}")
    a("s_barrier")
    MEAN, C_T, RSTD = 228, 232, 233
    a.wait_vm("st")
    for q in range(1, 8):
        a(f"v_add_f32 v{ST}, v{ST}, v{ST+2*q}")
        a(f"v_add_f32 v{ST+1}, v{ST+1}, v{ST+2*q+1}")
    xhalf_sum(ST, 235); xhalf_sum(ST+1, 235)
    stats_from_sums(ST, ST+1, MEAN, C_T, RSTD, 234)
    AB = 216
    a(f"v_add_u32 v{AB}, {LDS_W1A}, v{vTRS0}")
    a(f"v_add_u32 v{AB+1}, {LDS_W1A}, v{vTRS1}")
    a(f"v_add_u32 v{AB+2}, {LDS_W1B}, v{vTRS0}")
    a(f"v_add_u32 v{AB+3}, {LDS_W1B}, v{vTRS1}")
    WBF = 176
    for i in range(4): a(f"v_mov_b32 v{200+i}, 0x3f803f80")
    zero_acc(128)
    a(f"s_cmp_eq_u32 s{sWAVE}, 0"); a("s_cselect_b64 vcc, -1, 0")
    a(f"v_cndmask_b32 v220, v{AB+1}, v{AB}, vcc")
    a(f"s_cmp_eq_u32 s{sWAVE}, 2"); a("s_cselect_b64 vcc, -1, 0")
    a(f"v_cndmask_b32 v220, v220, v{AB+2}, vcc")
    a(f"s_cmp_eq_u32 s{sWAVE}, 3"); a("s_cselect_b64 vcc, -1, 0")
    a(f"v_cndmask_b32 v220, v220, v{AB+3}, vcc")
    def rd(base, ks, b, tag):
        off = (32 * (ks >> 1) + 8 * (ks & 1)) * 128
        a(f"ds_read_b64_tr_b16 {v(b,2)}, v{base} offset:{off}", tag=tag)
        a(f"ds_read_b64_tr_b16 {v(b+2,2)}, v{base} offset:{off+512}", tag=tag)
    for ks in range(35):
        if ks < 32: rd(220, ks, WBF + (ks & 3) * 4, f"c{ks}")
        if ks >= 3:
            a.wait_lgkm(f"c{ks-3}")
            a(f"{MF} {v(128,16)}, {v(200,4)}, {v(WBF+((ks-3)&3)*4,4)}, {v(128,16)}")
    a("v_cvt_pk_bf16_f32 v221, v128, v128")
    a("v_and_b32 v221, 0xffff0000, v221")
    a("v_sub_f32 v222, v128, v221")
    a("v_cvt_pk_bf16_f32 v224, v221, v222")
    a("v_cvt_pk_bf16_f32 v225, v221, 0")
    a("v_mov_b32 v226, 0"); a("v_mov_b32 v227, 0")
    a(f"s_lshl_b32 s74, s{sWAVE}, 10")
    a(f"v_add_u32 v220, s74, v{vL16}")
    a(f"ds_write_b128 v220, {v(224,4)} offset:{LDS_SCR}")
    a("s_waitcnt lgkmcnt(0)")
    a("s_barrier")
    CS = 200
    for nt in range(4):
        a(f"ds_read_b128 {v(CS+4*nt,4)}, v{vL16} offset:{LDS_SCR+nt*1024}", tag="csr")
    a.wait_lgkm("csr")
    tile_base(75, 112*1024, sWAVE)
    a(f"s_lshl_b32 s76, s{sIDX}, 13")
    a("s_add_u32 s75, s75, s76")
    a(f"s_add_u32 s75, s75, {WS_H}")
    ACC = 128
    for nt in range(4):
        zero_acc(ACC)
        for ks in range(35):
            if ks < 32: rd(AB + nt, ks, WBF + (ks & 3) * 4, f"p{nt}_{ks}")
            if ks >= 3:
                k2 = ks - 3
                if nt == 0: a.wait_vm(f"x{k2}")
                a.wait_lgkm(f"p{nt}_{k2}")
                a(f"{MF} {v(ACC,16)}, {v(WBF+(k2&3)*4,4)}, {v(4*k2,4)}, {v(ACC,16)}")
        a(f"{MF} {v(ACC,16)}, {v(CS+4*nt,4)}, {v(MEAN,4)}, {v(ACC,16)}")
        E = 144
        for i in range(16):
            a(f"v_mul_f32 v{E+i}, v{ACC+i}, v{C_T}")
            a(f"v_exp_f32 v{E+i}, -v{E+i}")
            a(f"v_add_f32 v{E+i}, 1.0, v{E+i}")
            a(f"v_rcp_f32 v{E+i}, v{E+i}")
            a(f"v_mul_f32 v{ACC+i}, v{ACC+i}, v{RSTD}")
            a(f"v_mul_f32 v{ACC+i}, v{ACC+i}, v{E+i}")
        O = 160 + (nt & 1) * 8
        for i in range(8):
            a(f"v_cvt_pk_bf16_f32 v{O+i}, v{ACC+2*i}, v{ACC+2*i+1}")
        local_stores([f"buffer_store_dwordx4 {v(O,4)}, v{vL16}, {srd(S_WS)}, s75 offen offset:0",
                      f"buffer_store_dwordx4 {v(O+4,4)}, v{vL16}, {srd(S_WS)}, s75 offen offset:1024"])
        if nt < 3: a("s_add_u32 s75, s75, 2048")
    team_flag_off(75)
    a("s_waitcnt vmcnt(0)")
    flag_store(75, 3 + 4*layer, True)
    a.label(lab_skip)
    a.vm_reset(); a.lg_reset()

def p4(layer):
    sTB, sTTO, sTTX, sNT = 60, 61, 62, 63
    a("s_barrier")
    if layer == 0:
        load_w2()
    a(f"s_lshr_b32 s{sTB}, s{sIDX}, 3")
    a(f"s_lshl_b32 s{sTB}, s{sTB}, 1")
    a(f"s_lshr_b32 s74, s{sWAVE}, 1")
    a(f"s_add_u32 s{sTTO}, s{sTB}, s74")
    a(f"s_xor_b32 s{sTTX}, s{sTTO}, 1")
    a(f"s_and_b32 s{sNT}, s{sIDX}, 7")
    a(f"s_lshl_b32 s{sNT}, s{sNT}, 1")
    a(f"s_and_b32 s74, s{sWAVE}, 1")
    a(f"s_add_u32 s{sNT}, s{sNT}, s74")
    R, RES = 224, 192
    make_R(R, 232)
    load_resid(RES, sTTO, sNT, False)
    a(f"s_mul_i32 s74, s{sWAVE}, 7")
    a("s_lshr_b32 s74, s74, 1")
    a("s_lshl_b32 s74, s74, 2")
    a(f"s_add_u32 s74, s74, s{sTB}")
    a("s_mov_b64 s[64:65], 0x3333")
    a("s_lshl_b64 s[64:65], s[64:65], s74")
    team_poll(3 + 4*layer, "s64", "s65")
    a.wait_vm("w2")
    ACC = {("x", 0): 128, ("x", 1): 144, ("o", 0): 160, ("o", 1): 176}
    for k in ACC.values(): zero_acc(k)
    for trel, st in (("x", sTTX), ("o", sTTO)):
        tile_base(75, 112*1024, st)
        a(f"s_mul_i32 s76, s{sWAVE}, {28*1024}")
        a("s_add_u32 s75, s75, s76")
        a(f"s_add_u32 s75, s75, {WS_H}")
        for ks in range(28):
            if ks % 4 == 0 and ks: a("s_add_u32 s75, s75, 4096")
            a(f"buffer_load_dwordx4 {v(4*ks,4)}, v{vL16}, {srd(S_WS)}, s75 offen offset:{(ks%4)*1024} sc1", tag=f"h{trel}{ks}")
        for ks in range(28):
            a.wait_vm(f"h{trel}{ks}")
            for slot in range(2):
                a(f"{MF} {v(ACC[(trel,slot)],16)}, {ag((ks*2+slot)*4,4)}, {v(4*ks,4)}, {v(ACC[(trel,slot)],16)}")
    for key, x in ((("o", 1), 1), (("x", 0), 2), (("x", 1), 3)):
        a(f"s_xor_b32 s74, s{sWAVE}, {x}")
        a("s_lshl_b32 s74, s74, 14")
        a(f"s_lshl_b32 s75, s{sWAVE}, 12")
        a("s_add_u32 s74, s74, s75")
        a(f"s_add_u32 s74, s74, {LDS_RED}")
        a(f"v_add_u32 v200, s74, v{vL16}")
        for q in range(4): a(f"ds_write_b128 v200, {v(ACC[key]+4*q,4)} offset:{q*1024}")
    a("s_waitcnt lgkmcnt(0)")
    a("s_barrier")
    for n, x in enumerate((1, 2, 3)):
        a(f"s_xor_b32 s74, s{sWAVE}, {x}")
        a("s_lshl_b32 s74, s74, 12")
        a(f"s_lshl_b32 s75, s{sWAVE}, 14")
        a("s_add_u32 s74, s74, s75")
        a(f"s_add_u32 s74, s74, {LDS_RED}")
        a(f"v_add_u32 v200, s74, v{vL16}")
        for q in range(4): a(f"ds_read_b128 {v(16*n+4*q,4)}, v200 offset:{q*1024}", tag="ex")
    a.wait_lgkm("ex")
    A0 = ACC[("o", 0)]
    for n in range(3):
        for i in range(16): a(f"v_add_f32 v{A0+i}, v{A0+i}, v{16*n+i}")
    a("s_barrier")
    finish_tile(A0, R, RES, sTTO, sNT, layer == 1, 4 + 4*layer, layer == 1)

def p1_layer1_head():
    dma_wqkv_raw()
    dma_slab(S_WO, vDMA1K, 1024, ("nt64", 128), LDS_WO, "wo")
    a(f"s_and_b32 s74, s{sWAVE}, 1")
    a("s_lshl_b32 s74, s74, 1")
    a("s_lshl_b32 s63, 0x33333333, s74")
    a(f"s_cmp_lt_u32 s{sWAVE}, 2")
    a("s_cselect_b32 s64, s63, 0")
    a("s_cselect_b32 s65, 0, s63")
    team_poll(4, "s64", "s65")
    tile_base(75, 32*1024, sWAVE)
    a(f"s_add_u32 s75, s75, {WS_X}")
    tile_base(77, 4096, sWAVE)
    a(f"s_add_u32 s77, s77, {WS_STATS}")
    ST = 200
    for q in range(4):
        a(f"buffer_load_dwordx4 {v(ST+4*q,4)}, v{vL16}, {srd(S_WS)}, s77 offen offset:{q*1024} sc1", tag="st")
    for ks in range(32):
        if ks % 4 == 0 and ks: a("s_add_u32 s75, s75, 4096")
        a(f"buffer_load_dwordx4 {v(4*ks,4)}, v{vL16}, {srd(S_WS)}, s75 offen offset:{(ks%4)*1024} sc1", tag=f"x{ks}")
    a.wait_vm("st")
    for q in range(1, 8):
        a(f"v_add_f32 v{ST}, v{ST}, v{ST+2*q}")
        a(f"v_add_f32 v{ST+1}, v{ST+1}, v{ST+2*q+1}")
    xhalf_sum(ST, 235); xhalf_sum(ST+1, 235)
    stats_from_sums(ST, ST+1, 228, 232, 233, 234)
    a("s_waitcnt vmcnt(0)")
    a("s_barrier")

def epilogue():
    a.label("L_end")
    a("s_endpgm")

FORCE_SLOW = len(sys.argv) > 3 and sys.argv[3] == "slow"
def run_all():
    prologue()
    step = 0
    for layer in range(2):
        p1(layer)
        if STOP == 1 + 5*layer:
            dump_regs(128, 16, 0); return
        a("s_barrier")
        lab = a.newlabel("L_w1a")
        a(f"s_cmp_ge_u32 s{sIDX}, 14")
        a(f"s_cbranch_scc1 {lab}")
        dma_slab(S_W1, vDMAW1, 3584, ("ft", 256), LDS_W1A, "w1a")
        a.label(lab)
        if layer == 0: pack_w2()
        p15(layer)
        if STOP == 2 + 5*layer: return
        p2(layer)
        if STOP == 3 + 5*layer: return
        p3(layer)
        if STOP == 4 + 5*layer: return
        p4(layer)
        if STOP == 5 + 5*layer: return
run_all()
epilogue()

body = finalize(a.items, verbose=True)
hdr = open(f"cdna_kernels/{NAME}.s.ref").read().split("; Override launch geometry")[0]
src = hdr + "; @launch grid=(256,1,1) block=(256,1,1) lds=163840\n"
src += f""".amdgcn_target "amdgcn-amd-amdhsa--gfx950"
.text
.globl {NAME}_kernel
.p2align 8
.type {NAME}_kernel,@function
{NAME}_kernel:
{body}
.section .rodata,"a"
.p2align 6
.amdhsa_kernel {NAME}_kernel
  .amdhsa_next_free_vgpr 512
  .amdhsa_next_free_sgpr 96
  .amdhsa_accum_offset 256
  .amdhsa_group_segment_fixed_size 0
  .amdhsa_kernarg_size 80
  .amdhsa_user_sgpr_count 2
  .amdhsa_user_sgpr_kernarg_segment_ptr 1
  .amdhsa_system_sgpr_workgroup_id_x 1
.end_amdhsa_kernel
"""
open(OUT, "w").write(src)
print("wrote", OUT, len(src), "bytes")
```

```python
import re

TRANS = ("v_exp_f32", "v_log_f32", "v_rcp_f32", "v_rsq_f32", "v_sqrt_f32", "v_sin_f32", "v_cos_f32")
_REG = re.compile(r"^(-|abs\()?([vas])(?:\[(\d+):(\d+)\]|(\d+))\)?$")

def parse_reg(tok):
    t = tok.strip()
    if t.startswith("-"): t = t[1:]
    if t.startswith("abs(") and t.endswith(")"): t = t[4:-1]
    if t.startswith("|") and t.endswith("|"): t = t[1:-1]
    if t in ("vcc", "exec", "m0", "scc"): return [(t, 0)]
    if t in ("vcc_lo", "vcc_hi"): return [("vcc", 0)]
    if t in ("exec_lo", "exec_hi"): return [("exec", 0)]
    m = re.match(r"^([vas])\[(\d+):(\d+)\]$", t)
    if m: return [(m.group(1), i) for i in range(int(m.group(2)), int(m.group(3)) + 1)]
    m = re.match(r"^([vas])(\d+)$", t)
    if m: return [(m.group(1), int(m.group(2)))]
    return []

def split_ops(s):
    out, depth, cur = [], 0, ""
    for ch in s:
        if ch in "[(": depth += 1
        if ch in "])": depth -= 1
        if ch == "," and depth == 0:
            out.append(cur.strip()); cur = ""
        else: cur += ch
    if cur.strip(): out.append(cur.strip())
    return out

class Ins:
    def __init__(self, text, tag=None, alt=False):
        self.text = text; self.tag = tag; self.alt = alt
        self.kind = "other"; self.reads = set(); self.writes = set(); self.slots = 1
        self.passes = 0; self.srcC = set(); self.srcAB = set(); self.op = ""
        self.wide_store = False; self.is_lds_dma = False
        self.parse()
    def parse(self):
        t = self.text.split(";")[0].strip()
        if not t or t.endswith(":") or t.startswith("."):
            self.kind = "label" if t.endswith(":") else "dir"; self.slots = 0; return
        parts = t.split(None, 1)
        op = parts[0]; self.op = op
        rest = parts[1] if len(parts) > 1 else ""
        ops = split_ops(rest)
        mods = []
        if ops:
            last = ops[-1].split()
            ops[-1] = last[0] if last else ""
            mods = last[1:]
        self.mods = mods
        R = [parse_reg(o) for o in ops]
        def rd(*idx):
            for i in idx:
                if i < len(R): self.reads.update(R[i])
        def wr(*idx):
            for i in idx:
                if i < len(R): self.writes.update(R[i])
        n = len(R)
        if op.startswith("v_mfma"):
            self.kind = "mfma"; self.passes = 8 if "32x32" in op else 4
            wr(0); rd(1, 2, 3); self.srcC = set(R[3]); self.srcAB = set(R[1]) | set(R[2])
        elif op.startswith("v_"):
            self.kind = "valu"
            if op.startswith("v_cmp"):
                wr(0); rd(*range(1, n))
            elif op.startswith("v_permlane"):
                wr(0, 1); rd(0, 1)
            elif op.startswith(("v_fmac", "v_dot2c", "v_pk_fmac")):
                wr(0); rd(*range(0, n))
            elif op.startswith("v_cndmask"):
                wr(0); rd(*range(1, n))
                if n == 3: self.reads.add(("vcc", 0))
            elif op.startswith(("v_add_co", "v_sub_co", "v_addc_co", "v_subb_co")):
                wr(0, 1); rd(*range(2, n))
            else:
                wr(0); rd(*range(1, n))
        elif op.startswith("ds_"):
            self.kind = "ds"
            if op.startswith(("ds_read", "ds_bpermute", "ds_swizzle", "ds_permute")):
                wr(0); rd(*range(1, n))
            else:
                rd(*range(0, n))
        elif op.startswith(("buffer_", "global_")):
            self.kind = "vmem"
            if op in ("buffer_inv", "buffer_wbl2"):
                pass
            elif "lds" in mods:
                rd(*range(0, n)); self.reads.add(("m0", 0)); self.is_lds_dma = True
            elif "load" in op:
                wr(0); rd(*range(1, n))
            else:
                rd(*range(0, n))
                if op.endswith(("x3", "x4")): self.wide_store = True; self.store_data = set(R[0])
        elif op.startswith("s_"):
            if op in ("s_nop",):
                self.kind = "nop"; self.slots = int(ops[0], 0) + 1
            elif op.startswith(("s_waitcnt", "s_barrier", "s_branch", "s_cbranch", "s_endpgm", "s_setprio", "s_sleep", "s_setpc")):
                self.kind = "other"
            elif op.startswith(("s_load", "s_memtime", "s_memrealtime", "s_buffer_load")):
                self.kind = "smem"; wr(0); rd(*range(1, n))
            elif op.startswith("s_cmp") or op.startswith("s_bitcmp"):
                self.kind = "salu"; rd(*range(0, n))
            else:
                self.kind = "salu"; wr(0); rd(*range(1, n))
                if "saveexec" in op: self.writes.add(("exec", 0)); self.reads.add(("exec", 0))
        else:
            raise ValueError("unknown op " + t)

def isv(r): return r[0] in ("v", "a")
def iss(r): return r[0] in ("s", "vcc")

def need_gap(P, I):
    g = 0
    if P.kind == "valu":
        wv = {r for r in P.writes if isv(r)}
        ws = {r for r in P.writes if iss(r)}
        if wv:
            if I.kind == "mfma" and (wv & I.reads): g = max(g, 2)
            if I.kind == "valu":
                if I.op.startswith("v_permlane") and (wv & I.reads): g = max(g, 2)
                if I.op.startswith(("v_readfirstlane", "v_readlane")) and (wv & I.reads): g = max(g, 1)
                if "dpp" in I.text or "row_" in I.text:
                    if wv & I.reads: g = max(g, 2)
                if P.op in TRANS and (wv & I.reads): g = max(g, 1)
        if wv and P.op.startswith("v_dot"):
            if (wv & (I.reads | I.writes)):
                same_c = I.op == P.op and I.op.startswith("v_dot2c") and (wv & I.writes) and not (wv & (I.reads - I.writes))
                if not (I.op == P.op and I.op.startswith("v_dot2c") and wv == {r for r in I.writes if isv(r)}):
                    g = max(g, 3)
        if ws:
            if I.kind == "valu" and (ws & I.reads): g = max(g, 4 if I.op.startswith(("v_readlane", "v_writelane")) else 2)
            if I.kind == "vmem" and (ws & I.reads): g = max(g, 5)
            if I.kind == "mfma" and (ws & I.reads): g = max(g, 2)
    if P.kind == "mfma":
        D = P.writes
        big = {8: 12, 4: 8}[P.passes]; ov = {8: 10, 4: 6}[P.passes]; war = {8: 7, 4: 3}[P.passes]
        if I.kind in ("valu", "ds", "vmem") and (D & (I.reads | I.writes)): g = max(g, big)
        if I.kind == "mfma":
            if D & I.srcAB: g = max(g, big)
            if D & I.srcC:
                if not (I.srcC == D and I.passes == P.passes): g = max(g, ov)
            elif D & I.writes:
                g = max(g, ov)
        if I.kind == "valu" and (P.srcC & I.writes): g = max(g, war)
    if P.kind == "salu" and ("m0", 0) in P.writes and I.is_lds_dma: g = max(g, 1)
    if P.kind == "vmem" and P.wide_store:
        if P.store_data & I.writes: g = max(g, 2 if I.kind == "valu" else 1)
    if P.kind == "salu" and ("exec", 0) in P.writes and I.kind == "mfma": g = max(g, 0)
    return g

class Asm:
    def __init__(self):
        self.items = []
        self.uid = 0
    def __call__(self, text, tag=None, alt=False):
        for line in text.strip("\n").split("\n"):
            if line.strip():
                self.items.append(Ins(line.strip(), tag=tag, alt=alt))
    def raw(self, ins): self.items.append(ins)
    def label(self, name): self.items.append(Ins(name + ":"))
    def newlabel(self, base="L"):
        self.uid += 1; return f"{base}_{self.uid}"
    def wait_vm(self, tag): self.items.append(("WVM", tag))
    def wait_lgkm(self, tag): self.items.append(("WLG", tag))
    def vm_reset(self): self.items.append(("VMRESET",))
    def lg_reset(self): self.items.append(("LGRESET",))
    def fence(self): self.items.append(("FENCE",))

def finalize(items, verbose=False):
    out = []
    vm, lg = [], []
    hist = []
    pos = 0
    nnop = 0
    def emit(ins):
        nonlocal pos, nnop
        if ins.kind in ("label", "dir"):
            out.append(ins.text); return
        need = 0
        for P, pp in hist:
            gap = pos - pp - P.slots
            r = need_gap(P, ins)
            if r > gap: need = max(need, r - gap)
        while need > 0:
            k = min(need, 16)
            out.append(f"  s_nop {k-1}"); pos += k; need -= k; nnop += k
        out.append("  " + ins.text)
        hist.append((ins, pos)); pos += ins.slots
        while hist and pos - hist[0][1] > 24: hist.pop(0)
    for it in items:
        if isinstance(it, tuple):
            if it[0] == "WVM":
                tag = it[1]
                idx = [i for i, t in enumerate(vm) if t == tag]
                if idx:
                    n = len(vm) - 1 - idx[-1]
                    assert n <= 63 or True
                    emit(Ins(f"s_waitcnt vmcnt({min(n,63)})"))
                    vm = vm[idx[-1] + 1:] if n <= 63 else vm[len(vm)-63:]
            elif it[0] == "WLG":
                tag = it[1]
                idx = [i for i, t in enumerate(lg) if t == tag]
                if idx:
                    n = len(lg) - 1 - idx[-1]
                    emit(Ins(f"s_waitcnt lgkmcnt({min(n,15)})"))
                    lg = lg[idx[-1] + 1:] if n <= 15 else lg[len(lg)-15:]
            elif it[0] == "VMRESET": vm = []
            elif it[0] == "LGRESET": lg = []
            elif it[0] == "FENCE":
                out.append("  s_nop 15"); pos += 16; hist = []
            continue
        ins = it
        if ins.kind == "vmem" and not ins.alt and ins.op not in ("buffer_inv",):
            vm.append(ins.tag)
        if ins.kind == "ds" and not ins.alt: lg.append(ins.tag)
        if ins.kind == "smem": lg.append("SMEM?")
        if ins.op == "s_waitcnt" and not ins.alt:
            m = re.search(r"vmcnt\((\d+)\)", ins.text)
            if m:
                n = int(m.group(1)); vm = vm[len(vm) - n:] if n else []
            m = re.search(r"lgkmcnt\((\d+)\)", ins.text)
            if m:
                n = int(m.group(1)); lg = lg[len(lg) - n:] if n else []
        emit(ins)
    if verbose: print("inserted nop slots:", nnop)
    return "\n".join(out) + "\n"
```

```python
import sys
sys.path.insert(0, "dev")
from asmlib import *

NAME = "interleave_layers__linear_kernel_hedgehog__dense_activation_silu__prompt"
OUT = sys.argv[1] if len(sys.argv) > 1 else f"cdna_kernels/{NAME}.s"
STOP = int(sys.argv[2]) if len(sys.argv) > 2 else 99
PROF = "prof" in sys.argv
FORCE_SLOW = "slow" in sys.argv

WS_FLAG = 0x000000; WS_HELLO = 0x004000; WS_KVF = 0x006000; WS_PKF = 0x008000
WS_STATS = 0x010000; WS_CSW1 = 0x050000
WS_CS = 0x050000; WS_CSF = 0x00A000
WS_KVP = 0x080000; WS_KVZ = 0x280000
WS_X = 0x400000; WS_H = 0x600000; WS_W2P = 0xE00000; WS_WQP = 0x1000000
WS_DBG = 0x1400000
WS_SIZE = 0x10000000

S_X, S_WQKV, S_WPHI, S_WO, S_W1, S_W2, S_OUT, S_DBG, S_WS = 4, 8, 12, 16, 20, 24, 28, 32, 36
def srd(b): return f"s[{b}:{b+3}]"
sWAVE, sTEAM, sIDX, sTAGLO, sTAGHI, sMODE = 40, 41, 42, 44, 45, 46
sLO32 = 48; sC16 = 50; sSPIN = 80
vL16, vTR64, vTR64Q, vTRS0, vTRS1, vTRO0, vTRO1, vL8 = 255, 254, 253, 252, 251, 250, 249, 248
vDMA1K, vDMAW1, vDMAQ, vLANE, vRS4 = 247, 246, 245, 244, 243
vSTAMP = 242
aWPHI = 224; aIP = 232; aIM = 236; aCS = 240
aCSK, aCSV, aCSQ = 240, 242, 244
LOG2E = 0x3fb8aa3b
R0, R1, R2, R3, R4 = 0, 32768, 65536, 98304, 131072
MF = "v_mfma_f32_32x32x16_bf16"
a = Asm()
def v(i, n=1): return f"v{i}" if n == 1 else f"v[{i}:{i+n-1}]"
def ag(i, n=1): return f"a{i}" if n == 1 else f"a[{i}:{i+n-1}]"

class Cap:
    def __enter__(self): self.saved = a.items; a.items = []; return self
    def __exit__(self, *e): self.items = a.items; a.items = self.saved
def cost(it):
    if isinstance(it, tuple):
        if it[0] == "GROUP": return sum(cost(x) for x in it[1] if isinstance(x, tuple) or not x.alt)
        return 0
    if it.kind in ("label", "dir"): return 0
    if it.kind == "mfma": return 32
    if it.op in TRANS or it.op.startswith("v_permlane"): return 8
    if it.kind == "nop": return 4 * it.slots
    return 4
def merge(main, side, extra=0):
    out = []; si = 0
    i = 0; n = len(main)
    while i < n:
        it = main[i]; out.append(it); i += 1
        if not isinstance(it, tuple) and it.kind == "mfma":
            j = i; c = 0
            while j < n and (isinstance(main[j], tuple) or main[j].kind != "mfma"):
                c += cost(main[j]); j += 1
            budget = 24 - c + extra
            while si < len(side) and budget > 0:
                k = cost(side[si])
                if k > budget and budget < 24 - c + extra: break
                out.append(side[si]); budget -= k; si += 1
    out += side[si:]
    return out

STAMP_NAMES = []
def stamp(name):
    if not PROF: return
    i = len(STAMP_NAMES); STAMP_NAMES.append(name)
    a("s_memtime s[90:91]", alt=True)
    a("s_waitcnt lgkmcnt(0)")
    a(f"v_writelane_b32 v{vSTAMP}, s90, {i}")
def stamp_flush():
    if not PROF: return
    a("s_memrealtime s[90:91]")
    a("s_waitcnt lgkmcnt(0)")
    a(f"v_writelane_b32 v{vSTAMP}, s90, 63")
    a(f"v_writelane_b32 v{vSTAMP}, s{sMODE}, 61")
    a(f"s_lshl_b32 s74, s2, 2")
    a(f"s_add_u32 s74, s74, s{sWAVE}")
    a(f"s_lshl_b32 s74, s74, 8")
    a(f"s_add_u32 s74, s74, {WS_DBG}")
    a(f"v_lshlrev_b32 v239, 2, v{vLANE}")
    a(f"buffer_store_dword v{vSTAMP}, v239, {srd(S_WS)}, s74 offen")
    open("stamps.txt", "w").write("\n".join(STAMP_NAMES))

def prologue():
    a("s_cmp_ge_u32 s2, 256")
    a("s_cbranch_scc1 L_end")
    a("s_load_dwordx8 s[52:59], s[0:1], 0")
    a("s_load_dwordx8 s[60:67], s[0:1], 32")
    a("s_load_dwordx4 s[68:71], s[0:1], 64")
    a("s_memrealtime s[72:73]")
    L = vLANE
    a(f"v_and_b32 v{L}, 63, v0")
    a("v_lshrrev_b32 v1, 6, v0")
    a(f"v_readfirstlane_b32 s{sWAVE}, v1")
    a("s_and_b32 s74, s2, 7")
    a("s_lshr_b32 s75, s2, 3")
    a(f"s_and_b32 s{sIDX}, s75, 15")
    a("s_lshr_b32 s75, s75, 4")
    a("s_lshl_b32 s74, s74, 1")
    a(f"s_add_u32 s{sTEAM}, s74, s75")
    a(f"s_lshr_b32 s74, s{sIDX}, 3")
    a("s_lshl_b32 s95, s75, 1")
    a("s_or_b32 s95, s95, s74")
    a("s_lshl_b32 s92, s95, 1")
    a("s_lshl_b32 s93, s75, 2")
    a(f"s_and_b32 s74, s{sIDX}, 1")
    a("s_lshl_b32 s94, s75, 1")
    a("s_or_b32 s94, s94, s74")
    a("s_lshl_b32 s94, s94, 1")
    a(f"s_mov_b64 s[{sLO32}:{sLO32+1}], 0xffffffff")
    a(f"s_mov_b32 s{sC16}, 0x0000ffff")
    a(f"s_mov_b32 s{sC16+1}, 0x0000ffff")
    a(f"v_lshlrev_b32 v{vL16}, 4, v{L}")
    a(f"v_lshlrev_b32 v{vL8}, 3, v{L}")
    a(f"v_lshrrev_b32 v1, 5, v{L}")
    a(f"v_bfe_u32 v2, v{L}, 2, 2")
    a(f"v_and_b32 v3, 3, v{L}")
    a(f"v_bfe_u32 v4, v{L}, 4, 1")
    a(f"v_lshlrev_b32 v{vRS4}, 4, v1")
    a(f"v_lshrrev_b32 v5, 2, v{L}")
    a("s_movk_i32 s74, 3072")
    a("v_mul_lo_u32 v8, v5, s74")
    a(f"v_lshl_add_u32 v{vDMAQ}, v3, 4, v8")
    a("v_lshl_add_u32 v5, v1, 4, v2")
    a("v_lshlrev_b32 v6, 6, v5")
    a("v_lshl_add_u32 v6, v4, 5, v6")
    a(f"v_lshl_add_u32 v{vTR64}, v3, 3, v6")
    a(f"v_add_u32 v{vTR64Q}, 0x10000, v{vTR64}")
    a("v_and_b32 v7, 1, v3")
    a("v_lshlrev_b32 v7, 5, v7")
    a("v_lshl_add_u32 v7, v4, 4, v7")
    a("v_lshrrev_b32 v8, 1, v3")
    a("v_lshl_add_u32 v7, v8, 3, v7")
    a("v_lshrrev_b32 v8, 1, v2")
    a("v_lshl_add_u32 v7, v8, 6, v7")
    a(f"v_lshl_add_u32 v{vTRS0}, v5, 7, v7")
    a(f"v_xor_b32 v{vTRS1}, 64, v{vTRS0}")
    a("v_lshl_add_u32 v5, v1, 2, v2")
    a(f"v_lshl_add_u32 v{vTRO0}, v5, 7, v7")
    a(f"v_xor_b32 v{vTRO1}, 64, v{vTRO0}")
    a(f"v_lshrrev_b32 v5, 3, v{L}")
    a(f"v_and_b32 v6, 7, v{L}")
    a("v_lshlrev_b32 v8, 2, v4")
    a("v_xor_b32 v6, v6, v8")
    a("v_lshlrev_b32 v6, 4, v6")
    a(f"v_lshl_add_u32 v{vDMA1K}, v5, 10, v6")
    a("s_movk_i32 s74, 3584")
    a("v_mul_lo_u32 v8, v5, s74")
    a(f"v_add_u32 v{vDMAW1}, v8, v6")
    a("s_waitcnt lgkmcnt(0)")
    sizes = [2048*512*2, 512*1536*2, 32*16*16*2, 512*512*2, None, 512*1792*2, 1792*512*2, 2048*512*2, 256, WS_SIZE]
    dst = [S_X, S_WQKV, S_WPHI, S_WO, None, S_W1, S_W2, S_OUT, S_DBG, S_WS]
    for i, (d, sz) in enumerate(zip(dst, sizes)):
        if d is None: continue
        a(f"s_mov_b32 s{d}, s{52+2*i}")
        a(f"s_mov_b32 s{d+1}, s{53+2*i}")
        a(f"s_mov_b32 s{d+2}, {sz}")
        a(f"s_mov_b32 s{d+3}, 0x00020000")
    a(f"s_lshl_b64 s[{sTAGLO}:{sTAGHI}], s[72:73], 8")
    a(f"s_or_b32 s{sTAGLO}, s{sTAGLO}, 0x80")
    a(f"s_or_b32 s74, s2, s{sWAVE}")
    a("s_cmp_eq_u32 s74, 0")
    a("s_cbranch_scc0 L_notag")
    a(f"v_mov_b32 v2, s{sTAGLO}")
    a(f"v_mov_b32 v3, s{sTAGHI}")
    a("v_mov_b32 v1, 0")
    a(f"buffer_store_dwordx2 v[2:3], v1, {srd(S_DBG)}, 0 offen sc0 sc1", alt=True)
    a.label("L_notag")
    if PROF:
        a(f"v_mov_b32 v{vSTAMP}, 0")
        a(f"v_writelane_b32 v{vSTAMP}, s72, 62")

def onehot(dst, vslot, t0, t1, is_agpr=False):
    a(f"v_and_b32 v{t0}, 1, v{vslot}")
    a(f"v_lshlrev_b32 v{t0}, 4, v{t0}")
    a(f"s_movk_i32 s74, 0x3f80")
    a(f"v_lshlrev_b32 v{t0}, v{t0}, s74")
    a(f"v_lshrrev_b32 v{t1}, 1, v{vslot}")
    for q in range(4):
        a(f"v_cmp_eq_u32 vcc, {q}, v{t1}")
        if is_agpr:
            a(f"v_cndmask_b32 v{t0+2}, 0, v{t0}, vcc")
            a(f"v_accvgpr_write_b32 a{dst+q}, v{t0+2}")
        else:
            a(f"v_cndmask_b32 v{dst+q}, 0, v{t0}, vcc")

def consts(t):
    L = vLANE
    a(f"v_and_b32 v{t}, 3, v{L}")
    a(f"v_bfe_u32 v{t+1}, v{L}, 3, 1")
    a(f"v_lshl_add_u32 v{t}, v{t+1}, 2, v{t}")
    a(f"v_bfe_u32 v{t+1}, v{L}, 2, 1")
    a(f"v_lshrrev_b32 v{t+2}, 5, v{L}")
    a(f"v_xor_b32 v{t+1}, v{t+1}, v{t+2}")
    a(f"v_lshl_add_u32 v{t}, v{t+1}, 3, v{t}")
    a(f"v_bfe_u32 v{t+1}, v{L}, 4, 1")
    a(f"v_lshl_add_u32 v{t+3}, v{t+1}, 3, v{t}")
    onehot(aIP, t+3, t+4, t+5, True)
    a(f"v_xor_b32 v{t+1}, 1, v{t+1}")
    a(f"v_lshl_add_u32 v{t+3}, v{t+1}, 3, v{t}")
    onehot(aIM, t+3, t+4, t+5, True)

def load_wphi(r):
    L = vLANE
    a(f"v_and_b32 v1, 15, v{L}")
    a("v_lshlrev_b32 v1, 1, v1")
    a(f"v_lshrrev_b32 v2, 5, v{L}")
    a("v_lshl_add_u32 v1, v2, 7, v1")
    a(f"s_lshl_b32 s74, s{sIDX}, 10")
    for hl in range(2):
        for j in range(8):
            d = (j & 3) + 8 * (j >> 2)
            a(f"buffer_load_ushort v{r+hl*8+j}, v1, {srd(S_WPHI)}, s74 offen offset:{hl*512+d*32}", tag="wphi")
def fix_wphi(r, t):
    a.wait_vm("wphi")
    a(f"v_bfe_u32 v{t}, v{vLANE}, 4, 1")
    for hl in range(2):
        a(f"v_cmp_eq_u32 vcc, {hl}, v{t}")
        for q in range(4):
            a(f"v_lshl_or_b32 v{t+1}, v{r+hl*8+2*q+1}, 16, v{r+hl*8+2*q}")
            a(f"v_cndmask_b32 v{t+1}, 0, v{t+1}, vcc")
            a(f"v_accvgpr_write_b32 a{aWPHI+hl*4+q}, v{t+1}")

def dma_wqkv_raw():
    a(f"s_lshl_b32 s74, s{sIDX}, 6")
    a(f"s_mul_i32 s75, s{sWAVE}, {16*3072}")
    a("s_add_u32 s74, s74, s75")
    a(f"s_lshl_b32 s75, s{sWAVE}, 10")
    for sec, lb in ((1, R0), (2, R1), (0, R2)):
        for n in range(8):
            a(f"s_add_u32 s77, s94, {n}")
            a("s_and_b32 s77, s77, 7")
            a("s_lshl_b32 s76, s77, 12")
            a("s_add_u32 s76, s76, s75")
            a(f"s_add_u32 m0, s76, {lb}")
            a(f"s_mul_i32 s76, s77, {64*3072}")
            a("s_add_u32 s76, s76, s74")
            a(f"s_add_u32 s76, s76, {sec*1024}")
            a(f"buffer_load_dwordx4 v{vDMAQ}, {srd(S_WQKV)}, s76 offen lds", tag="wq")
def dma_wq_img_items(sr=(56, 57, 58)):
    s0, s1, s2 = sr
    with Cap() as pre:
        a(f"s_mul_i32 s{s0}, s{sIDX}, {96*1024}")
        a(f"s_lshl_b32 s{s1}, s{sWAVE}, 10")
        a(f"s_add_u32 s{s0}, s{s0}, s{s1}")
        a(f"s_add_u32 s{s0}, s{s0}, {WS_WQP}")
    groups = []
    for n in range(24):
        with Cap() as c:
            a(f"s_add_u32 m0, s{s1}, {n*4096}")
            a(f"s_add_u32 s{s2}, s{s0}, {n*4096}")
            a(f"buffer_load_dwordx4 v{vL16}, {srd(S_WS)}, s{s2} offen sc1 lds", tag="wq")
        groups.append(c.items)
    return pre.items, groups
def dma_slab(S, vdma, rowstride, colsel, lds_base, tag, row0=0, rows=512, col_extra=0):
    if colsel == "nt64":
        a(f"s_and_b32 s74, s{sIDX}, 7")
        a(f"s_lshl_b32 s74, s74, 7")
    else:
        a(f"s_lshl_b32 s74, s{sIDX}, 8")
    a(f"s_mul_i32 s75, s{sWAVE}, {8*rowstride}")
    a("s_add_u32 s74, s74, s75")
    a(f"s_lshl_b32 s75, s{sWAVE}, 10")
    for n in range(rows // 32):
        a(f"s_add_u32 m0, s75, {lds_base + n*4096}")
        a(f"s_add_u32 s76, s74, {(row0 + n*32)*rowstride + col_extra}")
        a(f"buffer_load_dwordx4 v{vdma}, {srd(S)}, s76 offen lds", tag=tag)
def dma_slab_groups(S, vdma, rowstride, colsel, lds_base, tag, row0=0, rows=512, col_extra=0, sr=(56, 57, 58), rot=None):
    s0, s1, s2 = sr
    N = rows // 32
    with Cap() as pre:
        if colsel == "nt64":
            a(f"s_and_b32 s{s0}, s{sIDX}, 7")
            a(f"s_lshl_b32 s{s0}, s{s0}, 7")
        else:
            a(f"s_lshl_b32 s{s0}, s{sIDX}, 8")
        a(f"s_mul_i32 s{s1}, s{sWAVE}, {8*rowstride}")
        a(f"s_add_u32 s{s0}, s{s0}, s{s1}")
        a(f"s_add_u32 s{s0}, s{s0}, {row0*rowstride + col_extra}")
        a(f"s_lshl_b32 s{s1}, s{sWAVE}, 10")
        a(f"s_add_u32 s{s1}, s{s1}, {lds_base}")
    groups = []
    for n in range(N):
        with Cap() as c:
            if rot is None:
                a(f"s_add_u32 m0, s{s1}, {n*4096}")
                a(f"s_add_u32 s{s2}, s{s0}, {n*32*rowstride}")
            else:
                a(f"s_add_u32 s{s2}, s{rot}, {n}")
                a(f"s_and_b32 s{s2}, s{s2}, {N-1}")
                a(f"s_lshl_b32 s81, s{s2}, 12")
                a(f"s_add_u32 m0, s81, s{s1}")
                a(f"s_mul_i32 s{s2}, s{s2}, {32*rowstride}")
                a(f"s_add_u32 s{s2}, s{s2}, s{s0}")
            a(f"buffer_load_dwordx4 v{vdma}, {srd(S)}, s{s2} offen lds", tag=tag)
        groups.append(c.items)
    return pre.items, groups
def dma_w1(q, lds_base):
    dma_slab(S_W1, vDMAW1, 3584, "ft", lds_base, "w1", row0=256*(q & 1), rows=256, col_extra=128*(q >> 1))

def get_tag():
    lab = a.newlabel("L_tag")
    a("v_mov_b32 v238, 0")
    a(f"s_mov_b32 s{sSPIN}, 0")
    a.label(lab)
    a(f"buffer_load_dwordx2 {v(236,2)}, v238, {srd(S_DBG)}, 0 offen sc0 sc1", alt=True)
    a("s_waitcnt vmcnt(0)")
    a(f"v_readfirstlane_b32 s{sTAGLO}, v236")
    a(f"v_readfirstlane_b32 s{sTAGHI}, v237")
    a(f"s_add_u32 s{sSPIN}, s{sSPIN}, 1")
    a(f"s_cmp_gt_u32 s{sSPIN}, 0x40000")
    a(f"s_cbranch_scc1 {lab}_x")
    a(f"s_cmp_eq_u32 s{sTAGLO}, 0")
    a(f"s_cbranch_scc1 {lab}")
    a.label(lab + "_x")
    a.vm_reset()
def poll(soff, code, mask_lo, mask_hi):
    lab = a.newlabel("L_poll")
    a(f"s_or_b32 s70, s{sTAGLO}, {code}")
    a(f"s_mov_b32 s68, {mask_lo}")
    a(f"s_mov_b32 s69, {mask_hi}")
    a(f"s_mov_b32 s{sSPIN}, 0")
    a.label(lab)
    a(f"buffer_load_dwordx2 {v(236,2)}, v{vL8}, {srd(S_WS)}, s{soff} offen sc1", alt=True)
    a(f"s_add_u32 s{sSPIN}, s{sSPIN}, 1")
    a(f"s_cmp_gt_u32 s{sSPIN}, 0x40000")
    a(f"s_cbranch_scc1 {lab}_x")
    a("s_waitcnt vmcnt(0)")
    a("v_subrev_u32 v236, s70, v236")
    a(f"v_cmp_ge_u32 vcc, {15-code}, v236")
    a(f"v_cmp_eq_u32 s[66:67], s{sTAGHI}, v237")
    a("s_and_b64 vcc, vcc, s[66:67]")
    a("s_andn2_b64 s[66:67], s[68:69], vcc")
    a(f"s_cbranch_scc1 {lab}")
    a.label(lab + "_x")
    a("s_waitcnt vmcnt(0)")
    a.vm_reset()
def flag_store(soff, code, local):
    a(f"s_or_b32 s70, s{sTAGLO}, {code}")
    a("v_mov_b32 v236, s70")
    a(f"v_mov_b32 v237, s{sTAGHI}")
    a("v_mov_b32 v238, 0")
    a("s_mov_b64 exec, 1")
    if local:
        lab = a.newlabel("L_fs")
        a(f"s_cmp_eq_u32 s{sMODE}, 0")
        a(f"s_cbranch_scc1 {lab}")
        a(f"buffer_store_dwordx2 {v(236,2)}, v238, {srd(S_WS)}, s{soff} offen")
        a(f"s_branch {lab}_e")
        a.label(lab)
        a(f"buffer_store_dwordx2 {v(236,2)}, v238, {srd(S_WS)}, s{soff} offen sc0 sc1", alt=True)
        a.label(lab + "_e")
    else:
        a(f"buffer_store_dwordx2 {v(236,2)}, v238, {srd(S_WS)}, s{soff} offen sc0 sc1")
    a("s_mov_b64 exec, -1")
def team_flag_off(dst):
    a(f"s_lshl_b32 s{dst}, s{sIDX}, 2")
    a(f"s_add_u32 s{dst}, s{dst}, s{sWAVE}")
    a(f"s_lshl_b32 s{dst}, s{dst}, 3")
    a(f"s_lshl_b32 s74, s{sTEAM}, 9")
    a(f"s_add_u32 s{dst}, s{dst}, s74")
    a(f"s_add_u32 s{dst}, s{dst}, {WS_FLAG}")
def team_poll(code, mlo, mhi):
    a(f"s_lshl_b32 s71, s{sTEAM}, 9")
    a(f"s_add_u32 s71, s71, {WS_FLAG}")
    poll(71, code, mlo, mhi)
def local_stores(stores, tag="st"):
    lab = a.newlabel("L_st")
    with Cap() as c:
        a(f"s_cmp_eq_u32 s{sMODE}, 0")
        a(f"s_cbranch_scc1 {lab}")
        for t in stores: a(t, tag=tag)
        a(f"s_branch {lab}_e")
        a.label(lab)
        for t in stores: a(t + " sc0 sc1", alt=True)
        a.label(lab + "_e")
    a.items.append(("GROUP", c.items))
def get_mode():
    lab = a.newlabel("L_hello")
    a(f"s_lshl_b32 s71, s{sTEAM}, 7")
    a(f"s_add_u32 s71, s71, {WS_HELLO}")
    a(f"s_mov_b32 s{sSPIN}, 0")
    a.label(lab)
    a(f"buffer_load_dwordx2 {v(236,2)}, v{vL8}, {srd(S_WS)}, s71 offen sc1", alt=True)
    a(f"s_add_u32 s{sSPIN}, s{sSPIN}, 1")
    a(f"s_cmp_gt_u32 s{sSPIN}, 0x40000")
    a(f"s_cbranch_scc1 {lab}_x")
    a("s_waitcnt vmcnt(0)")
    a("v_and_b32 v238, 0xffffff8f, v236")
    a(f"v_cmp_eq_u32 vcc, s{sTAGLO}, v238")
    a(f"v_cmp_eq_u32 s[66:67], s{sTAGHI}, v237")
    a("s_and_b64 vcc, vcc, s[66:67]")
    a("s_mov_b64 s[68:69], 0xffff")
    a("s_andn2_b64 s[66:67], s[68:69], vcc")
    a(f"s_cbranch_scc1 {lab}")
    a.label(lab + "_x")
    a("s_waitcnt vmcnt(0)")
    a.vm_reset()
    a("v_readfirstlane_b32 s66, v236")
    a("v_cmp_ne_u32 vcc, s66, v236")
    a("s_and_b32 s66, vcc_lo, 0xffff")
    a("s_cmp_eq_u32 s66, 0")
    a(f"s_cselect_b32 s{sMODE}, 1, 0")
    if FORCE_SLOW: a(f"s_mov_b32 s{sMODE}, 0")
def tile_base(dst, tile_bytes, s_tt):
    a(f"s_lshl_b32 s{dst}, s{sTEAM}, 2")
    a(f"s_add_u32 s{dst}, s{dst}, s{s_tt}")
    a(f"s_mul_i32 s{dst}, s{dst}, {tile_bytes}")

def stats_from_sums(vS, vQ, vMean4, vC, vRstd, t):
    a(f"v_mul_f32 v{vS}, 0x3b000000, v{vS}")
    a(f"v_mul_f32 v{vQ}, 0x3b000000, v{vQ}")
    a(f"v_fma_f32 v{vQ}, -v{vS}, v{vS}, v{vQ}")
    a(f"v_max_f32 v{vQ}, 0, v{vQ}")
    a(f"v_add_f32 v{vQ}, 0x3727c5ac, v{vQ}")
    a(f"v_rsq_f32 v{vRstd}, v{vQ}")
    a(f"v_mul_f32 v{vC}, {LOG2E:#x}, v{vRstd}")
    a(f"v_sub_f32 v{t}, 0, v{vS}")
    a(f"v_cvt_pk_bf16_f32 v{vMean4}, v{t}, v{t}")
    a(f"v_and_b32 v{t+1}, 0xffff0000, v{vMean4}")
    a(f"v_sub_f32 v{t+1}, v{t}, v{t+1}")
    a(f"v_cvt_pk_bf16_f32 v{vMean4+1}, v{t+1}, 0")
    a(f"v_cndmask_b32 v{vMean4}, 0, v{vMean4}, s[{sLO32}:{sLO32+1}]")
    a(f"v_cndmask_b32 v{vMean4+1}, 0, v{vMean4+1}, s[{sLO32}:{sLO32+1}]")
    a(f"v_mov_b32 v{vMean4+2}, 0")
    a(f"v_mov_b32 v{vMean4+3}, 0")
def xhalf_sum2(rA, rB, t):
    a(f"v_permlane32_swap_b32 v{rA}, v{rB}")
    a(f"v_add_f32 v{rA}, v{rA}, v{rB}")
    a(f"v_mov_b32 v{rB}, v{rA}")
    a(f"v_permlane32_swap_b32 v{rA}, v{rB}")
def load_stats_x(ST, s_tt):
    tile_base(75, 32*1024, s_tt)
    a(f"s_add_u32 s75, s75, {WS_X}")
    tile_base(77, 4096, s_tt)
    a(f"s_add_u32 s77, s77, {WS_STATS}")
    for q in range(4):
        a(f"buffer_load_dwordx4 {v(ST+4*q,4)}, v{vL16}, {srd(S_WS)}, s77 offen offset:{q*1024} sc1", tag="st")
    a("s_mov_b32 s59, s75")
def xload(ks):
    if ks % 4 == 0 and ks: a("s_add_u32 s59, s59, 4096")
    a(f"buffer_load_dwordx4 {v(4*ks,4)}, v{vL16}, {srd(S_WS)}, s59 offen offset:{(ks%4)*1024} sc1", tag=f"x{ks}")
def proc_stats(ST, MEAN, C_T, RSTD, t):
    a.wait_vm("st")
    for q in range(1, 8):
        a(f"v_add_f32 v{ST}, v{ST}, v{ST+2*q}")
        a(f"v_add_f32 v{ST+1}, v{ST+1}, v{ST+2*q+1}")
    xhalf_sum2(ST, ST+1, t)
    stats_from_sums(ST, ST+1, MEAN, C_T, RSTD, t)
def cs_frag(src, dst2, t):
    a(f"v_cvt_pk_bf16_f32 v{t}, v{src}, v{src}")
    a(f"v_and_b32 v{t}, 0xffff0000, v{t}")
    a(f"v_sub_f32 v{t+1}, v{src}, v{t}")
    a(f"v_cvt_pk_bf16_f32 v{dst2}, v{t}, v{t+1}")
    a(f"v_cvt_pk_bf16_f32 v{dst2+1}, v{t}, 0")

def pk(op, d, s0, s1, s2=None, bc1=False, bc2=False, neg0=False, neg1=False, neg2=False):
    srcs = [v(s0, 2), v(s1, 2)] + ([v(s2, 2)] if s2 is not None else [])
    n = len(srcs)
    hi = [1] * n
    if bc1: hi[1] = 0
    if bc2: hi[2] = 0
    neg = [int(neg0), int(neg1), int(neg2)][:n]
    t = f"{op} {v(d,2)}, " + ", ".join(srcs)
    if hi != [1] * n: t += " op_sel_hi:[" + ",".join(map(str, hi)) + "]"
    if any(neg): t += " neg_lo:[" + ",".join(map(str, neg)) + "] neg_hi:[" + ",".join(map(str, neg)) + "]"
    a(t)

def softmax2(p, c, out, t):
    M = [t, t+2]; E = [t+8, t+16]; A = [t+4, t+6]
    for h in range(2):
        P = p + 8*h; m = M[h] + 1
        a(f"v_max3_f32 v{M[h]}, v{P}, v{P+1}, v{P+2}")
        a(f"v_max3_f32 v{m}, -v{P}, -v{P+1}, -v{P+2}")
        a(f"v_max3_f32 v{M[h]}, v{M[h]}, v{P+3}, v{P+4}")
        a(f"v_max3_f32 v{m}, v{m}, -v{P+3}, -v{P+4}")
        a(f"v_max3_f32 v{M[h]}, v{M[h]}, v{P+5}, v{P+6}")
        a(f"v_max3_f32 v{m}, v{m}, -v{P+5}, -v{P+6}")
        a(f"v_max_f32 v{M[h]}, v{M[h]}, v{P+7}")
        a(f"v_max_f32 v{m}, v{m}, -v{P+7}")
    for h in range(2): a(f"v_permlane32_swap_b32 v{M[h]}, v{M[h]+1}")
    for h in range(2): a(f"v_max_f32 v{M[h]}, v{M[h]}, v{M[h]+1}")
    for h in range(2): a(f"v_mov_b32 v{M[h]+1}, v{M[h]}")
    for h in range(2): a(f"v_permlane32_swap_b32 v{M[h]}, v{M[h]+1}")
    for h in range(2): pk("v_pk_mul_f32", M[h], M[h], c, bc1=True)
    for h in range(2):
        P = p + 8*h
        a(f"v_mov_b32 v{A[h]}, v{M[h]+1}")
        for i in range(4):
            pk("v_pk_fma_f32", E[h]+2*i, P+2*i, c, A[h], bc1=True, bc2=True, neg0=True, neg2=True)
            pk("v_pk_fma_f32", P+2*i, P+2*i, c, M[h], bc1=True, bc2=True, neg2=True)
    for h in range(2):
        P = p + 8*h
        for i in range(8):
            a(f"v_exp_f32 v{P+i}, v{P+i}")
            a(f"v_exp_f32 v{E[h]+i}, v{E[h]+i}")
    for h in range(2):
        P = p + 8*h
        pk("v_pk_add_f32", M[h], P, P+2)
        pk("v_pk_add_f32", A[h], E[h], E[h]+2)
        pk("v_pk_add_f32", M[h], M[h], P+4)
        pk("v_pk_add_f32", A[h], A[h], E[h]+4)
        pk("v_pk_add_f32", M[h], M[h], P+6)
        pk("v_pk_add_f32", A[h], A[h], E[h]+6)
        a(f"v_add_f32 v{M[h]}, v{M[h]}, v{M[h]+1}")
        a(f"v_add_f32 v{M[h]+1}, v{A[h]}, v{A[h]+1}")
    for h in range(2): a(f"v_permlane32_swap_b32 v{M[h]}, v{M[h]+1}")
    for h in range(2): a(f"v_add_f32 v{M[h]}, v{M[h]}, v{M[h]+1}")
    for h in range(2): a(f"v_rcp_f32 v{M[h]}, v{M[h]}")
    for h in range(2): a(f"v_mov_b32 v{A[h]}, v{M[h]}")
    for h in range(2): a(f"v_permlane32_swap_b32 v{M[h]}, v{A[h]}")
    for h in range(2):
        P = p + 8*h
        for i in range(4):
            pk("v_pk_mul_f32", P+2*i, P+2*i, M[h], bc1=True)
            pk("v_pk_mul_f32", E[h]+2*i, E[h]+2*i, A[h], bc1=True)
        for i in range(4):
            a(f"v_cvt_pk_bf16_f32 v{out+8*h+i}, v{P+2*i}, v{P+2*i+1}")
            a(f"v_cvt_pk_bf16_f32 v{out+8*h+4+i}, v{E[h]+2*i}, v{E[h]+2*i+1}")

def trW(dst, base_v, off, step, tag):
    a(f"ds_read_b64_tr_b16 {v(dst,2)}, v{base_v} offset:{off}", tag=tag)
    a(f"ds_read_b64_tr_b16 {v(dst+2,2)}, v{base_v} offset:{off+step}", tag=tag)

def gemm_pass(nsteps, reads, waits, mfmas, dist, loads=None, ldist=8, extra=None):
    extra = list(extra or [])
    if loads:
        for ks in range(min(ldist, nsteps)): loads(ks)
    for ks in range(min(dist, nsteps)): reads(ks)
    for ks in range(nsteps):
        waits(ks)
        ms = mfmas(ks)
        a(ms[0])
        if ks + dist < nsteps: reads(ks + dist)
        for m in ms[1:2]: a(m)
        if loads and ks + ldist < nsteps: loads(ks + ldist)
        elif extra:
            a.items += extra.pop(0)
            if extra and len(ms) > 1: a.items += extra.pop(0)
        for m in ms[2:]: a(m)
    for g in extra: a.items += g

MEAN, C_T, RSTD = 228, 232, 233
ACC_K, ACC_V, ACC_Q = 128, 144, 160
WB = 176
aCSW1 = 246

def sprinkle(items, groups, interval, start=0):
    out = []; acc = -start; gi = 0
    for it in items:
        out.append(it); acc += cost(it)
        if acc >= interval and gi < len(groups):
            out += groups[gi]; gi += 1; acc = 0
    for g in groups[gi:]: out += g
    return out

def w1_quarter_groups(q, lds_base, sr):
    s0, s1, s2 = sr
    with Cap() as pre:
        a(f"s_lshl_b32 s{s0}, s{sIDX}, 8")
        a(f"s_mul_i32 s{s1}, s{sWAVE}, {32*3584}")
        a(f"s_add_u32 s{s0}, s{s0}, s{s1}")
        a(f"s_lshl_b32 s{s1}, s{sWAVE}, 12")
    groups = []
    for j in range(2):
        for i in range(4):
            with Cap() as c:
                a(f"s_add_u32 m0, s{s1}, {lds_base + j*16384 + i*1024}")
                a(f"s_add_u32 s{s2}, s{s0}, {(256*(q&1) + 128*j + 8*i)*3584 + 128*(q>>1)}")
                a(f"buffer_load_dwordx4 v{vDMAW1}, {srd(S_W1)}, s{s2} offen lds", tag=f"w1q{q}")
            groups.append(c.items)
    return pre.items, groups

def w1_raw_groups(q, lds_base, sr):
    return dma_slab_groups(S_W1, vDMAW1, 3584, "ft", lds_base, f"w1q{q}", row0=256*(q & 1), rows=256, col_extra=128*(q >> 1), sr=sr, rot=93)

def w1_convert(quarters, T):
    blocks = [(q, lb + j*16384) for q, lb in quarters for j in range(2)]
    a(f"s_lshl_b32 s74, s{sWAVE}, 12")
    a(f"v_add_u32 v{T+32}, s74, v{vTRS0}")
    a(f"v_add_u32 v{T+33}, s74, v{vTRS1}")
    a(f"v_add_u32 v{T+34}, s74, v{vL16}")
    def offs(lb):
        return lb
    cur_add = 0
    def rebase(lb):
        nonlocal cur_add
        if lb + 4096 > 65535 + cur_add or lb < cur_add:
            d = lb - cur_add
            for r in (32, 33, 34): a(f"v_add_u32 v{T+r}, {d & 0xffffffff}, v{T+r}")
            cur_add = lb
    def rd(i):
        q, lb = blocks[i]; rebase(lb); o = lb - cur_add; R = T + (i & 1) * 16
        for sel in range(2):
            for sx in range(2):
                r = R + (sel*2+sx)*4
                a(f"ds_read_b64_tr_b16 {v(r,2)}, v{T+32+sel} offset:{o + sx*1024}", tag=f"cv{i}")
                a(f"ds_read_b64_tr_b16 {v(r+2,2)}, v{T+32+sel} offset:{o + sx*1024+512}", tag=f"cv{i}")
        return cur_add
    for i in range(len(blocks)):
        q, lb = blocks[i]
        a.wait_vm(f"w1q{q}")
        rd(i)
        a.wait_lgkm(f"cv{i}")
        o = lb - cur_add; R = T + (i & 1) * 16
        for f in range(4): a(f"ds_write_b128 v{T+34}, {v(R+4*f,4)} offset:{o + f*1024}")

def x_stage_dma(half):
    L = vLANE
    if half == 0:
        a(f"v_lshrrev_b32 v1, 5, v{L}")
        a(f"v_and_b32 v2, 31, v{L}")
        a("v_xor_b32 v2, v2, v1")
        a("v_lshlrev_b32 v2, 4, v2")
        a("v_lshl_add_u32 v208, v1, 10, v2")
        a(f"s_lshl_b32 s78, s{sTEAM}, 17")
        a(f"s_lshl_b32 s79, s{sWAVE}, 15")
        a("s_add_u32 s78, s78, s79")
        a(f"s_lshl_b32 s79, s{sWAVE}, 14")
        a(f"s_add_u32 s79, s79, {R3}")
    for n in range(16):
        a(f"s_add_u32 s77, s{sIDX}, {n}")
        a("s_and_b32 s77, s77, 15")
        a("s_lshl_b32 s76, s77, 5")
        a("s_and_b32 s76, s76, 0xf0")
        a(f"v_xor_b32 v{209+(n&1)}, s76, v208")
        a("s_lshl_b32 s76, s77, 10")
        a("s_add_u32 m0, s76, s79")
        a("s_lshl_b32 s76, s77, 11")
        a("s_add_u32 s76, s76, s78")
        if half: a("s_add_u32 s76, s76, 512")
        a(f"buffer_load_dwordx4 v{209+(n&1)}, {srd(S_X)}, s76 offen offset:{half*512} lds".replace(f"offset:{half*512} lds", "lds") if False else f"buffer_load_dwordx4 v{209+(n&1)}, {srd(S_X)}, s76 offen lds", tag=f"xs{half}")
def x_stage_read(half):
    L = vLANE
    if half == 0:
        a(f"v_and_b32 v1, 31, v{L}")
        a(f"v_lshrrev_b32 v2, 5, v{L}")
        a("v_lshlrev_b32 v2, 1, v2")
        a("v_and_b32 v3, 15, v1")
        a("v_xor_b32 v2, v2, v3")
        a("v_lshlrev_b32 v2, 4, v2")
        a("v_lshl_add_u32 v211, v1, 9, v2")
        a("v_add_u32 v211, s79, v211")
    a.wait_vm(f"xs{half}")
    for f in range(16):
        Tk, s = f >> 1, f & 1
        a(f"v_xor_b32 v{212+(f&1)}, {((4*Tk+s)&15)<<4}, v211")
        a(f"ds_read_b128 {v((half*16+f)*4,4)}, v{212+(f&1)} offset:{(Tk>>2)*256}", tag=f"xr{half}")

def kv_pass(k0, k1, fold_at=None, first=True, wait_x=False, extra=None):
    def reads(i):
        ks = k0 + i; Tk, s = ks >> 1, ks & 1
        b = WB + (ks % 4) * 8; off = (32*Tk + 8*s) * 64
        trW(b, vTR64, R0 + off, 256, f"kv{ks}")
        trW(b+4, vTR64, R1 + off, 256, f"kv{ks}")
    def waits(i):
        ks = k0 + i
        if wait_x: a.wait_vm(f"x{ks}")
        a.wait_lgkm(f"kv{ks}")
    def mfmas(i):
        ks = k0 + i; b = WB + (ks % 4) * 8
        ck = "0" if (first and i == 0) else v(ACC_K,16)
        cv = "0" if (first and i == 0) else v(ACC_V,16)
        ms = [f"{MF} {v(ACC_K,16)}, {v(b,4)}, {v(4*ks,4)}, {ck}", f"{MF} {v(ACC_V,16)}, {v(4*ks,4)}, {v(b+4,4)}, {cv}"]
        if fold_at == ks:
            ms += [f"{MF} {v(ACC_K,16)}, {ag(aCSK,4)}, {v(MEAN,4)}, {v(ACC_K,16)}",
                   f"{MF} {v(ACC_V,16)}, {v(MEAN,4)}, {ag(aCSV,4)}, {v(ACC_V,16)}"]
        return ms
    gemm_pass(k1 - k0, reads, waits, mfmas, 3, loads=(xload if wait_x else None), ldist=9, extra=extra)

def phi_mm(acc, kb, pkr):
    for i in range(8): a(f"v_cvt_pk_bf16_f32 v{kb+i}, v{acc+2*i}, v{acc+2*i+1}")
    a(f"{MF} {v(pkr,16)}, {ag(aWPHI,4)}, {v(kb,4)}, 0")
    a(f"{MF} {v(pkr,16)}, {ag(aWPHI+4,4)}, {v(kb+4,4)}, {v(pkr,16)}")

vTOUCH = 239
def touch_w1_groups():
    with Cap() as pre:
        a(f"v_lshrrev_b32 v226, 1, v{vLANE}")
        a("s_movk_i32 s87, 3584")
        a("v_mul_lo_u32 v226, v226, s87")
        a(f"v_and_b32 v227, 1, v{vLANE}")
        a("v_lshl_add_u32 v226, v227, 7, v226")
        a(f"s_lshl_b32 s87, s{sIDX}, 8")
        a(f"s_mul_i32 s88, s{sWAVE}, {128*3584}")
        a("s_add_u32 s87, s87, s88")
    groups = []
    for i in range(4):
        with Cap() as c:
            a(f"s_add_u32 s88, s87, {32*i*3584}")
            a(f"buffer_load_dword v{vTOUCH}, v226, {srd(S_W1)}, s88 offen", tag="touch")
        groups.append(c.items)
    return pre.items, groups
def touch_lin(sbase, nbytes, vaddr):
    groups = []
    for i in range((nbytes + 8191) // 8192):
        with Cap() as c:
            a(f"s_add_u32 s88, s{sbase}, {i*8192}")
            a(f"buffer_load_dword v{vTOUCH}, v{vaddr}, {srd(S_WS)}, s88 offen sc1", tag="touch")
        groups.append(c.items)
    return groups

SCR1 = R3
SCR2 = R4
PK_LDS = R3 + 24576
def pack_issue():
    with Cap() as c:
        lab = a.newlabel("L_pk1")
        a(f"s_lshl_b32 s82, s2, 1")
        a(f"s_and_b32 s83, s{sWAVE}, 1")
        a("s_add_u32 s83, s83, s82")
        a(f"s_lshl_b32 s86, s{sWAVE}, 12")
        a(f"s_add_u32 s86, s86, {SCR1}")
        a("s_cmp_ge_u32 s83, 448")
        a(f"s_cbranch_scc1 {lab}")
        a(f"s_cmp_ge_u32 s{sWAVE}, 2")
        a(f"s_cbranch_scc1 {lab}_w1")
        a("s_and_b32 s84, s83, 7")
        a("s_lshr_b32 s85, s83, 3")
        a("s_lshl_b32 s74, s84, 7")
        a("s_lshl_b32 s75, s85, 15")
        a("s_add_u32 s74, s74, s75")
        for n in range(4):
            a(f"s_add_u32 m0, s86, {n*1024}")
            a(f"s_add_u32 s76, s74, {n*8*1024}")
            a(f"buffer_load_dwordx4 v{vDMA1K}, {srd(S_W2)}, s76 offen lds", alt=True)
        a(f"s_branch {lab}")
        a.label(lab + "_w1")
        a("s_lshr_b32 s84, s83, 4")
        a("s_and_b32 s85, s83, 15")
        a("s_lshl_b32 s74, s84, 7")
        a(f"s_mul_i32 s75, s85, {32*3584}")
        a("s_add_u32 s74, s74, s75")
        for n in range(4):
            a(f"s_add_u32 m0, s86, {n*1024}")
            a(f"s_add_u32 s76, s74, {n*8*3584}")
            a(f"buffer_load_dwordx4 v{vDMAW1}, {srd(S_W1)}, s76 offen lds", alt=True)
        a.label(lab)
    a.items.append(("GROUP", c.items))
PKR_ = 64
def pack_read(T):
    a("s_waitcnt vmcnt(0)")
    a(f"v_add_u32 v{T+16}, s86, v{vTRS0}")
    a(f"v_add_u32 v{T+17}, s86, v{vTRS1}")
    for nt in range(2):
        for sx in range(2):
            r = T + (nt*2+sx)*4
            a(f"ds_read_b64_tr_b16 {v(r,2)}, v{T+16+nt} offset:{8*sx*128}", tag="pkr")
            a(f"ds_read_b64_tr_b16 {v(r+2,2)}, v{T+16+nt} offset:{8*sx*128+512}", tag="pkr")
    a.wait_lgkm("pkr")
def pack_store(T, U):
    lab = a.newlabel("L_pk2")
    with Cap() as c:
        a("s_cmp_ge_u32 s83, 448")
        a(f"s_cbranch_scc1 {lab}")
        a(f"s_cmp_ge_u32 s{sWAVE}, 2")
        a(f"s_cbranch_scc1 {lab}_w1")
        a("s_mul_i32 s74, s84, 224")
        a("s_lshl_b32 s75, s85, 1")
        a("s_add_u32 s74, s74, s75")
        a("s_lshl_b32 s74, s74, 10")
        a(f"s_add_u32 s74, s74, {WS_W2P}")
        for nt in range(2):
            for sx in range(2):
                r = T + (nt*2+sx)*4
                a(f"s_add_u32 s76, s74, {(nt*112+sx)*1024}")
                a(f"buffer_store_dwordx4 {v(r,4)}, v{vL16}, {srd(S_WS)}, s76 offen sc0 sc1", alt=True)
        a(f"s_branch {lab}")
        a.label(lab + "_w1")
        for i in range(4): a(f"v_mov_b32 v{U+32+i}, 0x3f803f80")
        a("s_nop 1")
        for nt in range(2):
            a(f"{MF} {v(U+16*nt,16)}, {v(U+32,4)}, {v(T+nt*8,4)}, 0")
            a(f"{MF} {v(U+16*nt,16)}, {v(U+32,4)}, {v(T+nt*8+4,4)}, {v(U+16*nt,16)}")
        a(f"v_and_b32 v{U+32}, 31, v{vLANE}")
        a(f"v_lshlrev_b32 v{U+32}, 6, v{U+32}")
        a("s_lshl_b32 s74, s84, 12")
        a("s_lshl_b32 s75, s85, 2")
        a("s_add_u32 s74, s74, s75")
        a(f"s_add_u32 s74, s74, {WS_CS}")
        a("s_nop 15")
        a("s_mov_b64 exec, 0xffffffff")
        a(f"buffer_store_dword v{U}, v{U+32}, {srd(S_WS)}, s74 offen sc0 sc1", alt=True)
        a(f"buffer_store_dword v{U+16}, v{U+32}, {srd(S_WS)}, s74 offen offset:2048 sc0 sc1", alt=True)
        a("s_mov_b64 exec, -1")
        a.label(lab)
    a.items.append(("GROUP", c.items))
def pack_flag():
    lab = a.newlabel("L_pk3")
    a("s_cmp_ge_u32 s83, 448")
    a(f"s_cbranch_scc1 {lab}")
    a("s_lshl_b32 s75, s84, 6")
    a("s_add_u32 s75, s75, s85")
    a("s_lshl_b32 s75, s75, 3")
    a(f"s_add_u32 s75, s75, {WS_PKF}")
    a("s_lshl_b32 s76, s83, 3")
    a(f"s_add_u32 s76, s76, {WS_CSF}")
    a(f"s_cmp_ge_u32 s{sWAVE}, 2")
    a("s_cselect_b32 s75, s76, s75")
    a(f"s_or_b32 s70, s{sTAGLO}, 1")
    a("v_mov_b32 v236, s70")
    a(f"v_mov_b32 v237, s{sTAGHI}")
    a("v_mov_b32 v238, 0")
    a("s_mov_b64 exec, 1")
    a(f"buffer_store_dwordx2 {v(236,2)}, v238, {srd(S_WS)}, s75 offen sc0 sc1", alt=True)
    a("s_mov_b64 exec, -1")
    a.label(lab)
def load_cs_w1(T):
    a(f"s_lshl_b32 s71, s{sIDX}, 8")
    a(f"s_add_u32 s71, s71, {WS_CSF}")
    poll(71, 1, "-1", "0")
    a(f"v_and_b32 v{T+32}, 31, v{vLANE}")
    a(f"v_lshlrev_b32 v{T+32}, 6, v{T+32}")
    a(f"v_lshl_add_u32 v{T+32}, v{vRS4}, 1, v{T+32}")
    a(f"s_lshl_b32 s74, s{sIDX}, 13")
    a(f"s_add_u32 s74, s74, {WS_CS}")
    for nt in range(4):
        a(f"s_add_u32 s75, s74, {nt*2048}")
        a(f"buffer_load_dwordx4 {v(T+8*nt,4)}, v{T+32}, {srd(S_WS)}, s75 offen sc1", tag="csl")
        a(f"buffer_load_dwordx4 {v(T+8*nt+4,4)}, v{T+32}, {srd(S_WS)}, s75 offen offset:16 sc1", tag="csl")
    a.wait_vm("csl")
    for nt in range(4):
        b = T + 8*nt
        pk("v_pk_add_f32", b, b, b+2); pk("v_pk_add_f32", b+4, b+4, b+6); pk("v_pk_add_f32", b, b, b+4)
        a(f"v_add_f32 v{b}, v{b}, v{b+1}")
        a(f"v_mov_b32 v{b+1}, v{b}")
        a(f"v_permlane32_swap_b32 v{b}, v{b+1}")
        a(f"v_add_f32 v{b}, v{b}, v{b+1}")
        cs_frag(b, b+2, b+4)
        a(f"v_accvgpr_write_b32 a{aCSW1+2*nt}, v{b+2}")
        a(f"v_accvgpr_write_b32 a{aCSW1+2*nt+1}, v{b+3}")

def pack_wq():
    a(f"s_mul_i32 s75, s{sTEAM}, 6144")
    a(f"s_mul_i32 s76, s{sWAVE}, 1536")
    a("s_add_u32 s75, s75, s76")
    a(f"v_add_u32 v232, s75, v{vL16}")
    a(f"v_add_u32 v233, s75, v{vL8}")
    a(f"ds_read_b128 {v(224,4)}, v232", tag="pw")
    a(f"ds_read_b64 {v(228,2)}, v233 offset:1024", tag="pw")
    a(f"s_mul_i32 s76, s{sIDX}, {96*1024}")
    a("s_add_u32 s75, s75, s76")
    a(f"s_add_u32 s75, s75, {WS_WQP}")
    a.wait_lgkm("pw")
    a(f"buffer_store_dwordx4 {v(224,4)}, v{vL16}, {srd(S_WS)}, s75 offen sc0 sc1", tag="pwst")
    a(f"buffer_store_dwordx2 {v(228,2)}, v{vL8}, {srd(S_WS)}, s75 offen offset:1024 sc0 sc1", tag="pwst")

def p1(layer):
    if layer == 0:
        load_wphi(160)
        dma_wqkv_raw()
        x_stage_dma(0)
        a(f"v_lshrrev_b32 v1, 1, v{vLANE}")
        a(f"v_and_b32 v2, 1, v{vLANE}")
        a("v_lshlrev_b32 v1, 10, v1")
        a("v_lshl_add_u32 v1, v2, 8, v1")
        a(f"buffer_load_dword v214, v1, {srd(S_X)}, s78 offen offset:512", tag="touch")
        a(f"buffer_load_dword v214, v1, {srd(S_X)}, s78 offen offset:640", tag="touch")
        consts(216)
        fix_wphi(160, 216)
        a.wait_vm("wq")
        a("s_barrier")
        stamp("p1_w_ready0")
        CSA = 128
        for i in range(4): a(f"v_mov_b32 v{216+i}, 0x3f803f80")
        a(f"s_cmp_ge_u32 s{sWAVE}, 3")
        a("s_cbranch_scc1 L_cs_skip")
        a(f"s_lshl_b32 s74, s{sWAVE}, 15")
        a(f"v_add_u32 v220, s74, v{vTR64}")
        gemm_pass(32, lambda ks: trW(WB+(ks%4)*4, 220, (32*(ks>>1)+8*(ks&1))*64, 256, f"cs{ks}"),
                  lambda ks: a.wait_lgkm(f"cs{ks}"),
                  lambda ks: [f"{MF} {v(CSA,16)}, {v(216,4)}, {v(WB+(ks%4)*4,4)}, {'0' if ks==0 else v(CSA,16)}"], 3)
        cs_frag(CSA, 222, 220)
        a.label("L_cs_skip")
        a.lg_reset()
        a("s_waitcnt lgkmcnt(0)")
        x_stage_read(0)
        a.wait_lgkm("xr0")
        a(f"v_add_u32 v220, s79, v{vL8}")
        a(f"ds_write_b64 v220, {v(222,2)}")
        a("s_waitcnt lgkmcnt(0)")
        a("s_barrier")
        a(f"v_add_u32 v220, {R3}, v{vL8}")
        for i in range(3):
            a(f"ds_read_b64 {ag(aCS+2*i,2)}, v220 offset:{i*16384}", tag="csr")
        a(f"v_mov_b32 v220, 0")
        for r in range(aCS+6, 256): a(f"v_accvgpr_write_b32 a{r}, v220")
        a.wait_lgkm("csr")
        a("s_barrier")
        x_stage_dma(1)
        stamp("p1_x0_ready0")
        a("v_mov_b32 v230, 0"); a("v_mov_b32 v231, 0"); a("v_mov_b32 v234, 0x3f803f80")
        for r in range(64):
            a(f"v_dot2c_f32_bf16 v230, v{r}, v234")
            a(f"v_dot2c_f32_bf16 v231, v{r}, v{r}")
        kv_pass(0, 16)
        x_stage_read(1)
        a.wait_lgkm("xr1")
        for r in range(64, 128):
            a(f"v_dot2c_f32_bf16 v230, v{r}, v234")
            a(f"v_dot2c_f32_bf16 v231, v{r}, v{r}")
        xhalf_sum2(230, 231, 235)
        stats_from_sums(230, 231, MEAN, C_T, RSTD, 234)
        kv_pass(16, 32, fold_at=20, first=False)
    else:
        a(f"s_and_b32 s74, s{sWAVE}, 1")
        a("s_lshl_b32 s74, s74, 1")
        a("s_lshl_b32 s63, 0x33333333, s74")
        a(f"s_cmp_lt_u32 s{sWAVE}, 2")
        a("s_cselect_b32 s64, s63, 0")
        a("s_cselect_b32 s65, 0, s63")
        team_poll(4, "s64", "s65")
        stamp("p1_polled1")
        load_stats_x(208, sWAVE)
        with Cap() as side: proc_stats(208, MEAN, C_T, RSTD, 234)
        with Cap() as main: kv_pass(0, 32, fold_at=24, wait_x=True)
        a.items += merge(main.items, side.items)
    stamp(f"p1_kvpass_end{layer}")
    PHI, KB, PKR, T = 160, 176, 184, 200
    wo_pre, wo_groups = dma_slab_groups(S_WO, vDMA1K, 1024, "nt64", R4, "wo", row0=0, rows=256, rot=92)
    phi_mm(ACC_K, KB, PKR)
    a("s_barrier")
    a.items += wo_pre
    if layer == 0: pack_issue()
    with Cap() as ke:
        a(f"s_lshl_b32 s74, s{sWAVE}, 7")
        a(f"s_add_u32 s74, s74, {SCR1 + 20480}")
        a(f"v_and_b32 v234, 31, v{vLANE}")
        a("v_lshlrev_b32 v234, 2, v234")
        a("v_add_u32 v234, s74, v234")
        a(f"ds_write_b32 v234, v{RSTD}")
        a(f"v_add_u32 v235, s74, v{vRS4}")
        RS = 128
        for q in range(4): a(f"ds_read_b128 {v(RS+4*q,4)}, v235 offset:{q*32}", tag="rs")
        softmax2(PKR, C_T, PHI, T)
        a.wait_lgkm("rs")
        for i in range(8): pk("v_pk_mul_f32", ACC_V+2*i, ACC_V+2*i, RS+2*i)
    a.items += sprinkle(ke.items, wo_groups, 64)
    VB0, VB1 = 176, 200
    D2 = (128, 184)
    for h in range(2):
        a(f"{MF} {v(D2[h],16)}, {v(PHI+8*h,4)}, {ag(aIP,4)}, 0")
        a(f"{MF} {v(D2[h],16)}, {v(PHI+8*h+4,4)}, {ag(aIM,4)}, {v(D2[h],16)}")
    for i in range(8): a(f"v_cvt_pk_bf16_f32 v{VB0+i}, v{ACC_V+2*i}, v{ACC_V+2*i+1}")
    for i in range(8):
        a(f"v_cndmask_b32 v{VB1+i}, v{VB0+i}, 0, s[{sC16}:{sC16+1}]")
        a(f"v_cndmask_b32 v{VB0+i}, 0, v{VB0+i}, s[{sC16}:{sC16+1}]")
    PKT = 144
    for h in range(2):
        for i in range(8): a(f"v_cvt_pk_bf16_f32 v{PKT+8*h+i}, v{D2[h]+2*i}, v{D2[h]+2*i+1}")
    KV = 160
    a(f"{MF} {v(KV,16)}, {v(PKT,4)}, {v(VB0,4)}, 0")
    a(f"{MF} {v(KV,16)}, {v(PKT+4,4)}, {v(VB0+4,4)}, {v(KV,16)}")
    a(f"{MF} {v(KV,16)}, {v(PKT+8,4)}, {v(VB1,4)}, {v(KV,16)}")
    a(f"{MF} {v(KV,16)}, {v(PKT+12,4)}, {v(VB1+4,4)}, {v(KV,16)}")
    ZZ = (208, 209)
    for h in range(2):
        d = D2[h]
        a(f"v_add_f32 v{ZZ[h]}, v{d}, v{d+1}")
        a(f"v_add_f32 v{210+h}, v{d+2}, v{d+3}")
    for i in range(4, 16, 2):
        for h in range(2):
            d = D2[h]
            a(f"v_add_f32 v{ZZ[h]}, v{ZZ[h]}, v{d+i}")
            a(f"v_add_f32 v{210+h}, v{210+h}, v{d+i+1}")
    for h in range(2): a(f"v_add_f32 v{ZZ[h]}, v{ZZ[h]}, v{210+h}")
    a(f"v_permlane32_swap_b32 v{ZZ[0]}, v{ZZ[1]}")
    a(f"v_add_f32 v{ZZ[0]}, v{ZZ[0]}, v{ZZ[1]}")
    if layer == 0: pack_read(176)
    a(f"s_lshl_b32 s74, s{sWAVE}, 12")
    a(f"s_add_u32 s74, s74, {SCR1}")
    a(f"v_add_u32 v210, s74, v{vL16}")
    a(f"s_lshl_b32 s74, s{sWAVE}, 8")
    a(f"s_add_u32 s74, s74, {SCR1}")
    a(f"v_lshlrev_b32 v211, 2, v{vLANE}")
    a("v_add_u32 v212, s74, v211")
    a(f"v_add_u32 v213, {SCR1}, v211")
    a(f"ds_write_b32 v212, v{ZZ[0]} offset:16384")
    for q in range(4): a(f"ds_write_b128 v210, {v(KV+4*q,4)} offset:{q*1024}")
    a(f"s_lshl_b32 s74, s{sWAVE}, 10")
    a(f"s_add_u32 s74, s74, {SCR1}")
    a(f"v_add_u32 v210, s74, v{vL16}")
    a("s_waitcnt lgkmcnt(0)")
    a("s_barrier")
    for w in range(4): a(f"ds_read_b128 {v(128+4*w,4)}, v210 offset:{w*4096}", tag="kvr")
    for w in range(4): a(f"ds_read_b32 v{144+w}, v213 offset:{16384+w*256}", tag="kvr")
    a(f"s_lshl_b32 s74, s{sIDX}, 4")
    a(f"s_add_u32 s74, s74, s{sTEAM}")
    a(f"s_lshl_b32 s75, s74, 11")
    a(f"s_lshl_b32 s76, s{sWAVE}, 9")
    a("s_add_u32 s75, s75, s76")
    a(f"s_add_u32 s75, s75, {WS_KVP + layer*0x100000}")
    a(f"s_lshl_b32 s77, s74, 8")
    a(f"s_add_u32 s77, s77, {WS_KVZ + layer*0x10000}")
    a.wait_lgkm("kvr")
    pk("v_pk_add_f32", 128, 128, 132); pk("v_pk_add_f32", 130, 130, 134)
    pk("v_pk_add_f32", 136, 136, 140); pk("v_pk_add_f32", 138, 138, 142)
    pk("v_pk_add_f32", 144, 144, 146)
    pk("v_pk_add_f32", 128, 128, 136); pk("v_pk_add_f32", 130, 130, 138)
    a("v_add_f32 v144, v144, v145")
    a("v_cvt_pk_bf16_f32 v132, v128, v129")
    a("v_cvt_pk_bf16_f32 v133, v130, v131")
    a(f"buffer_store_dwordx2 {v(132,2)}, v{vL8}, {srd(S_WS)}, s75 offen sc0 sc1", tag="kvst")
    with Cap() as c:
        a(f"s_cmp_eq_u32 s{sWAVE}, 0")
        a("s_cbranch_scc0 L_noz%d" % layer)
        a(f"buffer_store_dword v144, v211, {srd(S_WS)}, s77 offen sc0 sc1", alt=True)
        a.label("L_noz%d" % layer)
    a.items.append(("GROUP", c.items))
    stamp(f"p1_kvstored{layer}")
    if layer == 0: get_tag()
    a(f"s_lshl_b32 s75, s74, 2")
    a(f"s_add_u32 s75, s75, s{sWAVE}")
    a("s_lshl_b32 s75, s75, 3")
    a(f"s_add_u32 s75, s75, {WS_KVF}")
    a("s_waitcnt vmcnt(0)")
    flag_store(75, 1 + layer, False)
    if layer == 0:
        a(f"s_cmp_eq_u32 s{sWAVE}, 0")
        a("s_cbranch_scc0 L_nohello")
        a("s_getreg_b32 s74, hwreg(HW_REG_XCC_ID)")
        a("s_and_b32 s74, s74, 7")
        a("s_lshl_b32 s74, s74, 4")
        a(f"s_or_b32 s74, s74, s{sTAGLO}")
        a("v_mov_b32 v236, s74")
        a(f"v_mov_b32 v237, s{sTAGHI}")
        a("v_mov_b32 v238, 0")
        a(f"s_lshl_b32 s75, s{sTEAM}, 4")
        a(f"s_add_u32 s75, s75, s{sIDX}")
        a("s_lshl_b32 s75, s75, 3")
        a(f"s_add_u32 s75, s75, {WS_HELLO}")
        a("s_mov_b64 exec, 1")
        a(f"buffer_store_dwordx2 {v(236,2)}, v238, {srd(S_WS)}, s75 offen sc0 sc1", alt=True)
        a("s_mov_b64 exec, -1")
        a.label("L_nohello")
        pack_store(176, 128)
    stamp(f"p1_kvpub{layer}")
    a("s_waitcnt lgkmcnt(0)")
    a("s_barrier")
    wo1_pre, g0 = dma_slab_groups(S_WO, vDMA1K, 1024, "nt64", R3, "wo", row0=256, rows=256, rot=92)
    a.items += wo1_pre
    with Cap() as qp:
        gemm_pass(32, lambda ks: trW(WB+(ks%4)*4, vTR64Q, (32*(ks>>1)+8*(ks&1))*64, 256, f"q{ks}"),
                  lambda ks: a.wait_lgkm(f"q{ks}"),
                  lambda ks: [f"{MF} {v(ACC_Q,16)}, {v(WB+(ks%4)*4,4)}, {v(4*ks,4)}, {'0' if ks==0 else v(ACC_Q,16)}"]
                             + ([f"{MF} {v(ACC_Q,16)}, {ag(aCSQ,4)}, {v(MEAN,4)}, {v(ACC_Q,16)}"] if ks == 8 else []), 3)
    a.items += sprinkle(qp.items, g0, 64)
    stamp(f"p1_qpass{layer}")

PHQ = 128
WOF = 0
def wo_to_regs():
    sKH = 61
    a(f"s_and_b32 s{sKH}, s{sWAVE}, 1")
    a(f"s_cmp_eq_u32 s{sKH}, 0")
    a("s_cselect_b64 vcc, -1, 0")
    a(f"s_cselect_b32 s76, 32768, 0")
    a(f"s_add_u32 s76, s76, {R3}")
    a(f"v_cndmask_b32 v160, v{vTRO1}, v{vTRO0}, vcc")
    a(f"v_cndmask_b32 v161, v{vTRO0}, v{vTRO1}, vcc")
    a("v_add_u32 v160, s76, v160")
    a("v_add_u32 v161, s76, v161")
    for ks in range(16):
        for k2 in range(2):
            b = WOF + (ks*2+k2)*4
            a(f"ds_read_b64_tr_b16 {v(b,2)}, v{160+k2} offset:{ks*2048}", tag="wor")
            a(f"ds_read_b64_tr_b16 {v(b+2,2)}, v{160+k2} offset:{ks*2048+1024}", tag="wor")
    a("s_waitcnt lgkmcnt(0)")

def p15(layer):
    KVL, ZL = 176, 208
    a(f"s_lshl_b32 s71, s{sIDX}, 9")
    a(f"s_add_u32 s71, s71, {WS_KVF}")
    a(f"s_lshl_b32 s62, 0x11111111, s{sWAVE}")
    poll(71, 1 + layer, "s62", "s62")
    if layer == 0:
        pack_flag()
        get_mode()
    stamp(f"p15_polled{layer}")
    a(f"s_lshl_b32 s60, s{sIDX}, 15")
    a(f"s_lshl_b32 s75, s{sWAVE}, 9")
    a("s_add_u32 s60, s60, s75")
    a(f"s_add_u32 s60, s60, {WS_KVP + layer*0x100000}")
    a(f"v_lshlrev_b32 v224, 2, v{vLANE}")
    with Cap() as c:
        labz = a.newlabel("L_z")
        a(f"s_cmp_eq_u32 s{sWAVE}, 0")
        a(f"s_cbranch_scc0 {labz}")
        a(f"s_lshl_b32 s75, s{sIDX}, 12")
        a(f"s_add_u32 s75, s75, {WS_KVZ + layer*0x10000}")
        for t in range(16):
            a(f"buffer_load_dword v{ZL+t}, v224, {srd(S_WS)}, s75 offen offset:{t*256} sc1", alt=True)
        a.label(labz)
    a.items.append(("GROUP", c.items))
    a("s_lshl_b32 s75, s93, 12")
    a("s_add_u32 s61, s60, s75")
    a("s_xor_b32 s75, s75, 16384")
    a("s_add_u32 s60, s60, s75")
    gl = []
    for t in range(16):
        with Cap() as c:
            sr = 61 if t < 8 else 60
            if (t & 7) in (2, 4, 6): a(f"s_add_u32 s{sr}, s{sr}, 4096")
            a(f"buffer_load_dwordx2 {v(KVL+2*t,2)}, v{vL8}, {srd(S_WS)}, s{sr} offen offset:{(t&1)*2048} sc1", tag=f"kvl{t}")
        gl.append(c.items)
    a("s_barrier")
    with Cap() as qe:
        phi_mm(ACC_Q, 0, 8)
        softmax2(8, C_T, PHQ, 24)
    a.items += sprinkle(qe.items, gl, 16)
    stamp(f"p15_qepi{layer}")
    wo_to_regs()
    a("s_barrier")
    pre, g = w1_raw_groups(0, R3, (56, 57, 58))
    a.items += pre
    for x in g: a.items += x
    stamp(f"p15_woregs{layer}")
    a("v_mov_b32 v224, 0x00003f80"); a("v_mov_b32 v225, 0x3f800000")
    S = 144
    for e in range(4): a(f"v_mov_b32 v{S+e}, 0")
    for t in range(16):
        a.wait_vm(f"kvl{t}")
        if "nodot" in sys.argv:
            for e2 in range(2):
                a(f"v_lshlrev_b32 v148, 16, v{KVL+2*t+e2}")
                a(f"v_and_b32 v149, 0xffff0000, v{KVL+2*t+e2}")
                a(f"v_add_f32 v{S+2*e2}, v{S+2*e2}, v148")
                a(f"v_add_f32 v{S+2*e2+1}, v{S+2*e2+1}, v149")
        else:
            a(f"v_dot2c_f32_bf16 v{S}, v{KVL+2*t}, v224")
            a(f"v_dot2c_f32_bf16 v{S+1}, v{KVL+2*t}, v225")
            a(f"v_dot2c_f32_bf16 v{S+2}, v{KVL+2*t+1}, v224")
            a(f"v_dot2c_f32_bf16 v{S+3}, v{KVL+2*t+1}, v225")
    stamp(f"p15_summed{layer}")
    a(f"v_cvt_pk_bf16_f32 v226, v{S}, v{S+1}")
    a(f"v_cvt_pk_bf16_f32 v227, v{S+2}, v{S+3}")
    a(f"s_lshl_b32 s74, s{sWAVE}, 9")
    a(f"s_add_u32 s74, s74, {SCR2}")
    a(f"v_add_u32 v234, s74, v{vL8}")
    a(f"ds_write_b64 v234, {v(226,2)}")
    labz2 = a.newlabel("L_z2")
    a(f"s_cmp_eq_u32 s{sWAVE}, 0")
    a(f"s_cbranch_scc0 {labz2}")
    for st in (8, 4, 2):
        for i in range(0, st, 2): pk("v_pk_add_f32", ZL+i, ZL+i, ZL+i+st)
    a(f"v_add_f32 v{ZL}, v{ZL}, v{ZL+1}")
    L = vLANE
    a(f"v_bfe_u32 v148, v{L}, 4, 2")
    a(f"v_bfe_u32 v149, v{L}, 2, 1")
    a("v_lshl_add_u32 v148, v148, 1, v149")
    a(f"v_and_b32 v149, 3, v{L}")
    a(f"v_bfe_u32 v150, v{L}, 3, 1")
    a("v_lshl_add_u32 v149, v150, 2, v149")
    a("v_lshl_add_u32 v148, v148, 3, v149")
    a("v_lshlrev_b32 v148, 1, v148")
    a(f"v_add_u32 v148, {SCR2}, v148")
    a(f"v_cvt_pk_bf16_f32 v{ZL}, v{ZL}, v{ZL}")
    a(f"ds_write_b16 v148, v{ZL} offset:4096", alt=True)
    a.label(labz2)
    a("s_waitcnt lgkmcnt(0)")
    a("s_barrier")
    KVB, ZF = 144, 152
    a(f"v_add_u32 v234, {SCR2}, v{vL8}")
    a(f"v_add_u32 v235, {SCR2}, v{vRS4}")
    for w in range(4): a(f"ds_read_b64 {v(KVB+2*w,2)}, v234 offset:{w*512}", tag="kvb")
    for hp_ in range(4): a(f"ds_read_b128 {v(ZF+4*hp_,4)}, v235 offset:{4096+hp_*32}", tag="kvb")
    tile_base(75, 112*1024, sWAVE)
    a(f"s_lshl_b32 s76, s{sIDX}, 11")
    a("s_add_u32 s75, s75, s76")
    a(f"s_add_u32 s55, s75, {WS_H}")
    team_flag_off(54)
    a.wait_lgkm("kvb")
    AO = 168
    m = f"s[{sC16}:{sC16+1}]"
    for part in range(2):
        for i in range(4):
            a(f"v_cndmask_b32 v{AO+part*4+i}, v{ZF+part*4+i}, v{KVB+part*4+i}, {m}")
            a(f"v_cndmask_b32 v{AO+8+part*4+i}, v{KVB+part*4+i}, v{ZF+8+part*4+i}, {m}")
    N0, N1 = 184, 200
    if STOP == 2 and "dbg" in sys.argv:
        dump_regs(PHQ, 16, 0); dump_regs(144, 16, 1); dump_regs(160, 8, 2)
    a(f"{MF} {v(N0,16)}, {v(AO,4)}, {v(PHQ,4)}, 0")
    a(f"{MF} {v(N1,16)}, {v(AO+8,4)}, {v(PHQ+8,4)}, 0")
    a(f"{MF} {v(N0,16)}, {v(AO+4,4)}, {v(PHQ+4,4)}, {v(N0,16)}")
    a(f"{MF} {v(N1,16)}, {v(AO+12,4)}, {v(PHQ+12,4)}, {v(N1,16)}")
    a(f"v_add_f32 v216, 0x358637bd, v{N0+8}")
    a(f"v_add_f32 v218, 0x358637bd, v{N1}")
    a("v_rcp_f32 v216, v216"); a("v_rcp_f32 v218, v218")
    for i in range(4):
        pk("v_pk_mul_f32", N0+2*i, N0+2*i, 216, bc1=True)
        pk("v_pk_mul_f32", N1+8+2*i, N1+8+2*i, 218, bc1=True)
    for i in range(4):
        a(f"v_cvt_pk_bf16_f32 v{220+i}, v{N0+2*i}, v{N0+2*i+1}")
        a(f"v_cvt_pk_bf16_f32 v{224+i}, v{N1+8+2*i}, v{N1+8+2*i+1}")
    local_stores([f"buffer_store_dwordx4 {v(220,4)}, v{vL16}, {srd(S_WS)}, s55 offen",
                  f"buffer_store_dwordx4 {v(224,4)}, v{vL16}, {srd(S_WS)}, s55 offen offset:1024"])
    stamp(f"p15_stored{layer}")
    a("s_waitcnt vmcnt(0)")
    flag_store(54, 1 + 4*layer, True)

W2G = []
NW2_P2 = 18
def w2_load_items(do_poll=True, sr2=(52, 53)):
    with Cap() as pre:
        a(f"s_and_b32 s60, s{sIDX}, 7")
        a("s_lshl_b32 s71, s60, 9")
        a(f"s_add_u32 s71, s71, {WS_PKF}")
        a(f"s_mul_i32 s61, s{sWAVE}, 14")
        a("s_mov_b64 s[62:63], 0x3fff")
        a("s_lshl_b64 s[62:63], s[62:63], s61")
        if do_poll: poll(71, 1, "s62", "s63")
        a(f"s_and_b32 s61, s{sWAVE}, 1")
        a("s_lshl_b32 s62, s60, 1")
        a("s_or_b32 s63, s62, s61")
        a("s_xor_b32 s62, s63, 1")
        a(f"s_mul_i32 s64, s{sWAVE}, 28")
        for slot, sr in ((0, 63), (1, 62)):
            a(f"s_mul_i32 s{sr2[slot]}, s{sr}, 112")
            a(f"s_add_u32 s{sr2[slot]}, s{sr2[slot]}, s64")
            a(f"s_lshl_b32 s{sr2[slot]}, s{sr2[slot]}, 10")
            a(f"s_add_u32 s{sr2[slot]}, s{sr2[slot]}, {WS_W2P}")
    groups = []
    for slot in range(2):
        for ks in range(28):
            with Cap() as c:
                if ks % 4 == 0 and ks: a(f"s_add_u32 s{sr2[slot]}, s{sr2[slot]}, 4096")
                a(f"buffer_load_dwordx4 {ag((ks*2+slot)*4,4)}, v{vL16}, {srd(S_WS)}, s{sr2[slot]} offen offset:{(ks%4)*1024} sc1", tag="w2")
            groups.append(c.items)
    return pre.items, groups

def make_R(dst, t):
    L = vLANE
    a(f"v_and_b32 v{t}, 3, v{L}")
    a(f"v_bfe_u32 v{t+1}, v{L}, 3, 1")
    a(f"v_lshl_add_u32 v{t}, v{t+1}, 2, v{t}")
    a(f"v_bfe_u32 v{t+1}, v{L}, 2, 1")
    a(f"v_lshrrev_b32 v{t+2}, 5, v{L}")
    a(f"v_xor_b32 v{t+1}, v{t+1}, v{t+2}")
    a(f"v_lshl_add_u32 v{t}, v{t+1}, 3, v{t}")
    a(f"v_bfe_u32 v{t+1}, v{L}, 4, 1")
    a(f"v_lshl_add_u32 v{t+2}, v{t+1}, 3, v{t}")
    onehot(dst, t+2, t+3, t+4)
    a(f"v_xor_b32 v{t+1}, 1, v{t+1}")
    a(f"v_lshl_add_u32 v{t+2}, v{t+1}, 3, v{t}")
    onehot(dst+4, t+2, t+3, t+4)

def finish_addr(s_tt, s_nt32, raw_out, sA, sB, vA):
    if raw_out:
        tile_base(sA, 32*1024, s_tt)
        a(f"s_lshl_b32 s76, s{s_nt32}, 6")
        a(f"s_add_u32 s{sA}, s{sA}, s76")
        a(f"v_and_b32 v{vA}, 31, v{vLANE}")
        a(f"v_lshlrev_b32 v{vA}, 10, v{vA}")
        a(f"v_lshl_add_u32 v{vA}, v{vRS4}, 1, v{vA}")
        return
    tile_base(sA, 32*1024, s_tt)
    a(f"s_lshl_b32 s76, s{s_nt32}, 11")
    a(f"s_add_u32 s{sA}, s{sA}, s76")
    a(f"s_add_u32 s{sA}, s{sA}, {WS_X}")
    tile_base(sB, 4096, s_tt)
    a(f"s_bfe_u32 s76, s{s_nt32}, 0x20001")
    a("s_lshl_b32 s76, s76, 10")
    a(f"s_add_u32 s{sB}, s{sB}, s76")
    a(f"s_lshr_b32 s76, s{s_nt32}, 3")
    a("s_lshl_b32 s76, s76, 9")
    a(f"s_add_u32 s{sB}, s{sB}, s76")
    a(f"s_and_b32 s76, s{s_nt32}, 1")
    a("s_lshl_b32 s76, s76, 3")
    a(f"s_add_u32 s{sB}, s{sB}, s76")
    a(f"s_add_u32 s{sB}, s{sB}, {WS_STATS}")
    a(f"v_and_b32 v{vA}, 31, v{vLANE}")
    a(f"v_lshlrev_b32 v{vA}, 4, v{vA}")
    a(f"v_lshrrev_b32 v{vA+1}, 2, v{vRS4}")
    a(f"v_add_u32 v{vA}, v{vA}, v{vA+1}")

def finish_tile(acc, O, T, code, raw_out, sA, sB, vA, sF):
    for i in range(8): a(f"v_cvt_pk_bf16_f32 v{O+i}, v{acc+2*i}, v{acc+2*i+1}")
    if raw_out:
        a(f"buffer_store_dwordx4 {v(O,4)}, v{vA}, {srd(S_OUT)}, s{sA} offen sc0 sc1")
        a(f"buffer_store_dwordx4 {v(O+4,4)}, v{vA}, {srd(S_OUT)}, s{sA} offen offset:16 sc0 sc1")
        return
    lab = a.newlabel("L_st")
    st = [f"buffer_store_dwordx4 {v(O,4)}, v{vL16}, {srd(S_WS)}, s{sA} offen",
          f"buffer_store_dwordx4 {v(O+4,4)}, v{vL16}, {srd(S_WS)}, s{sA} offen offset:1024"]
    local_stores(st)
    pk("v_pk_add_f32", T, acc, acc+2)
    pk("v_pk_mul_f32", T+2, acc, acc)
    pk("v_pk_fma_f32", T+2, acc+2, acc+2, T+2)
    for i in range(2, 8):
        pk("v_pk_add_f32", T, T, acc+2*i)
        pk("v_pk_fma_f32", T+2, acc+2*i, acc+2*i, T+2)
    a(f"v_add_f32 v{T}, v{T}, v{T+1}")
    a(f"v_add_f32 v{T+1}, v{T+2}, v{T+3}")
    a(f"v_permlane32_swap_b32 v{T}, v{T+1}")
    a(f"v_add_f32 v{T}, v{T}, v{T+1}")
    local_stores([f"buffer_store_dword v{T}, v{vA}, {srd(S_WS)}, s{sB} offen"])
    a("s_waitcnt vmcnt(0)")
    flag_store(sF, code, True)

def load_resid(RES, s_tt, s_nt32, raw, vt):
    tile_base(75, 32*1024, s_tt)
    if raw:
        a(f"s_lshl_b32 s76, s{s_nt32}, 6")
        a("s_add_u32 s75, s75, s76")
        a(f"v_and_b32 v{vt}, 31, v{vLANE}")
        a(f"v_lshlrev_b32 v{vt}, 10, v{vt}")
        a(f"v_lshl_add_u32 v{vt}, v{vRS4}, 1, v{vt}")
        a(f"buffer_load_dwordx4 {v(RES,4)}, v{vt}, {srd(S_X)}, s75 offen", tag="res")
        a(f"buffer_load_dwordx4 {v(RES+4,4)}, v{vt}, {srd(S_X)}, s75 offen offset:16", tag="res")
    else:
        a(f"s_lshl_b32 s76, s{s_nt32}, 11")
        a("s_add_u32 s75, s75, s76")
        a(f"s_add_u32 s75, s75, {WS_X}")
        a(f"buffer_load_dwordx4 {v(RES,4)}, v{vL16}, {srd(S_WS)}, s75 offen sc1", tag="res")
        a(f"buffer_load_dwordx4 {v(RES+4,4)}, v{vL16}, {srd(S_WS)}, s75 offen offset:1024 sc1", tag="res")


def p2(layer):
    sTT, sKH, sNT = 60, 61, 62
    sA, sB, sF = 52, 53, 54
    a(f"s_lshr_b32 s{sTT}, s{sIDX}, 3")
    a(f"s_lshl_b32 s{sTT}, s{sTT}, 1")
    a(f"s_lshr_b32 s74, s{sWAVE}, 1")
    a(f"s_add_u32 s{sTT}, s{sTT}, s74")
    a(f"s_and_b32 s{sKH}, s{sWAVE}, 1")
    a(f"s_and_b32 s{sNT}, s{sIDX}, 7")
    a(f"s_lshl_b32 s{sNT}, s{sNT}, 1")
    a(f"s_add_u32 s{sNT}, s{sNT}, s{sKH}")
    R, RES = 128, 136
    w2t = []
    if layer == 0:
        w2pre, W2G_ = w2_load_items(True, (84, 85))
        a.items += w2pre
        W2G[:] = W2G_
        a(f"s_lshr_b32 s{sTT}, s{sIDX}, 3")
        a(f"s_lshl_b32 s{sTT}, s{sTT}, 1")
        a(f"s_lshr_b32 s74, s{sWAVE}, 1")
        a(f"s_add_u32 s{sTT}, s{sTT}, s74")
        a(f"s_and_b32 s{sKH}, s{sWAVE}, 1")
        a(f"s_and_b32 s{sNT}, s{sIDX}, 7")
        a(f"s_lshl_b32 s{sNT}, s{sNT}, 1")
        a(f"s_add_u32 s{sNT}, s{sNT}, s{sKH}")
        w2t = [W2G.pop(0) for _ in range(NW2_P2)]
    load_resid(RES, sTT, sNT, layer == 0, 232)
    make_R(R, 226)
    finish_addr(sTT, sNT, False, sA, sB, 240)
    team_flag_off(sF)
    a(f"s_lshl_b32 s63, 0x11111111, s{sTT}")
    a(f"s_cmp_eq_u32 s{sKH}, 0")
    a("s_cselect_b32 s64, s63, 0")
    a("s_cselect_b32 s65, 0, s63")
    team_poll(1 + 4*layer, "s64", "s65")
    stamp(f"p2_polled{layer}")
    OF = 144
    tile_base(75, 112*1024, sTT)
    a(f"s_lshl_b32 s76, s{sKH}, 14")
    a("s_add_u32 s75, s75, s76")
    a(f"s_add_u32 s59, s75, {WS_H}")
    def oload(ks):
        if ks % 4 == 0 and ks: a("s_add_u32 s59, s59, 4096")
        a(f"buffer_load_dwordx4 {v(OF+4*ks,4)}, v{vL16}, {srd(S_WS)}, s59 offen offset:{(ks%4)*1024} sc1", tag=f"o{ks}")
    AK, AS = 208, 224
    for ks in range(10): oload(ks)
    a(f"{MF} {v(AK,16)}, {v(R,4)}, {v(RES,4)}, 0")
    a(f"{MF} {v(AK,16)}, {v(R+4,4)}, {v(RES+4,4)}, {v(AK,16)}")
    a(f"s_lshl_b32 s74, s{sWAVE}, 12")
    a(f"s_add_u32 s75, s74, {SCR2}")
    a(f"v_add_u32 v128, s75, v{vL16}")
    a("s_xor_b32 s74, s74, 4096")
    a(f"s_add_u32 s75, s74, {SCR2}")
    a(f"v_add_u32 v129, s75, v{vL16}")
    a(f"v_lshlrev_b32 v130, 7, v{vLANE}")
    for ks in range(16):
        a.wait_vm(f"o{ks}")
        a(f"{MF} {v(AS,16)}, {v(WOF+(ks*2+1)*4,4)}, {v(OF+4*ks,4)}, {'0' if ks==0 else v(AS,16)}")
        if ks + 10 < 16: oload(ks + 10)
        else:
            for _ in range(3):
                if w2t: a.items += w2t.pop(0)
        a(f"{MF} {v(AK,16)}, {v(WOF+(ks*2)*4,4)}, {v(OF+4*ks,4)}, {v(AK,16)}")
    for g in w2t: a.items += g
    stamp(f"p2_mm{layer}")
    for q in range(4): a(f"ds_write_b128 v128, {v(AS+4*q,4)} offset:{q*1024}")
    a("s_waitcnt lgkmcnt(0)")
    a("s_barrier")
    for q in range(4): a(f"ds_read_b128 {v(144+4*q,4)}, v129 offset:{q*1024}", tag="ex")
    a.wait_lgkm("ex")
    for i in range(8): pk("v_pk_add_f32", AK+2*i, AK+2*i, 144+2*i)
    finish_tile(AK, 160, 168, 2 + 4*layer, False, sA, sB, 240, sF)
    a("s_barrier")
    pre, g = w1_raw_groups(1, R4, (56, 57, 58))
    a.items += pre
    for x in g: a.items += x

def p3(layer):
    lab_skip = f"L_p3skip{layer}"
    a(f"s_cmp_ge_u32 s{sIDX}, 14")
    a(f"s_cbranch_scc1 {lab_skip}")
    AB = 224
    a(f"v_add_u32 v{AB}, {R3}, v{vTRS0}")
    a(f"v_add_u32 v{AB+1}, {R3}, v{vTRS1}")
    a(f"v_add_u32 v{AB+2}, {R4}, v{vTRS0}")
    a(f"v_add_u32 v{AB+3}, {R4}, v{vTRS1}")
    if layer == 0: load_cs_w1(128)
    w2g = list(W2G) if layer == 0 else []
    a(f"s_and_b32 s74, s{sWAVE}, 1")
    a("s_lshl_b32 s74, s74, 1")
    a("s_lshl_b32 s63, 0x33333333, s74")
    a(f"s_cmp_lt_u32 s{sWAVE}, 2")
    a("s_cselect_b32 s64, s63, 0")
    a("s_cselect_b32 s65, 0, s63")
    team_poll(2 + 4*layer, "s64", "s65")
    a("s_barrier")
    stamp(f"p3_polled{layer}")
    ST = 160
    load_stats_x(ST, sWAVE)
    tile_base(55, 112*1024, sWAVE)
    a(f"s_lshl_b32 s76, s{sIDX}, 13")
    a("s_add_u32 s55, s55, s76")
    a(f"s_add_u32 s55, s55, {WS_H}")
    accs = [128, 144, 160, 176]
    WBF = 192
    E, O = 216, 0
    RS2, ONE2 = 220, 222
    def epi(nt, packed, O):
        acc = accs[nt]
        for g in range(4):
            A = acc + 4*g
            if packed:
                for i in range(2): pk("v_pk_mul_f32", E+2*i, A+2*i, C_T, bc1=True)
            else:
                for i in range(4): a(f"v_mul_f32 v{E+i}, v{A+i}, v{C_T}")
            for i in range(4): a(f"v_exp_f32 v{E+i}, -v{E+i}")
            if packed:
                for i in range(2): pk("v_pk_mul_f32", A+2*i, A+2*i, RS2, bc1=True)
                for i in range(2): pk("v_pk_add_f32", E+2*i, E+2*i, ONE2)
            else:
                for i in range(4): a(f"v_mul_f32 v{A+i}, v{A+i}, v{RSTD}")
                for i in range(4): a(f"v_add_f32 v{E+i}, 1.0, v{E+i}")
            for i in range(4): a(f"v_rcp_f32 v{E+i}, v{E+i}")
            if packed:
                for i in range(2): pk("v_pk_mul_f32", A+2*i, A+2*i, E+2*i)
            else:
                for i in range(4): a(f"v_mul_f32 v{A+i}, v{A+i}, v{E+i}")
            for i in range(2): a(f"v_cvt_pk_bf16_f32 v{acc+2*g+i}, v{A+2*i}, v{A+2*i+1}")
        a(f"s_add_u32 s56, s55, {nt*2048}")
        local_stores([f"buffer_store_dwordx4 {v(acc,4)}, v{vL16}, {srd(S_WS)}, s56 offen offset:0",
                      f"buffer_store_dwordx4 {v(acc+4,4)}, v{vL16}, {srd(S_WS)}, s56 offen offset:1024"])
    def qpass(p, extra, fold):
        pair, kh = p >> 1, p & 1
        n0, n1 = 2*pair, 2*pair + 1
        extra = list(extra)
        def reads(i):
            b = WBF + (i % 3) * 8
            off = (32*(i >> 1) + 8*(i & 1)) * 128
            trW(b, AB + 2*kh, off, 512, f"q{p}_{i}"); trW(b+4, AB + 2*kh + 1, off, 512, f"q{p}_{i}")
        reads(0); reads(1)
        for i in range(16):
            ks = 16*kh + i; b = WBF + (i % 3) * 8
            first = (kh == 0 and i == 0)
            if p < 2: a.wait_vm(f"x{ks}")
            a.wait_lgkm(f"q{p}_{i}")
            a(f"{MF} {v(accs[n0],16)}, {v(b,4)}, {v(4*ks,4)}, {'0' if first else v(accs[n0],16)}")
            if i + 2 < 16: reads(i + 2)
            a(f"{MF} {v(accs[n1],16)}, {v(b+4,4)}, {v(4*ks,4)}, {'0' if first else v(accs[n1],16)}")
            if p < 2 and ks + 9 < 32: xload(ks + 9)
            elif extra: a.items += extra.pop(0)
            if fold and i == 10:
                for n in (n0, n1): a(f"{MF} {v(accs[n],16)}, {ag(aCSW1+2*n,4)}, {v(MEAN,4)}, {v(accs[n],16)}")
        for g in extra: a.items += g
    for ks in range(9): xload(ks)
    b0_pre, b0 = w1_raw_groups(2, R3, (56, 57, 58))
    b1_pre, b1 = w1_raw_groups(3, R4, (86, 87, 88))
    with Cap() as side: proc_stats(ST, MEAN, C_T, RSTD, 234)
    with Cap() as main: qpass(0, [], False)
    a.items += merge(main.items, side.items)
    stamp(f"p3_q0{layer}")
    a("s_barrier")
    a.items += b0_pre
    qpass(1, b0, True)
    stamp(f"p3_q1{layer}")
    a("s_waitcnt vmcnt(0)")
    a("s_barrier")
    a.items += b1_pre
    with Cap() as side:
        epi(0, False, 0); epi(1, False, 0)
    with Cap() as m2: qpass(2, b1 + w2g[:6], False)
    w2g = w2g[6:]
    with Cap() as m3:
        a.wait_vm("w1q3")
        a("s_barrier")
        qpass(3, w2g[:16], True)
    w2g = w2g[16:]
    a.items += merge(m2.items + m3.items, side.items)
    stamp(f"p3_q3{layer}")
    a(f"v_mov_b32 v{RS2}, v{RSTD}")
    a(f"v_mov_b32 v{ONE2}, 1.0"); a(f"v_mov_b32 v{ONE2+1}, 1.0")
    with Cap() as tail:
        epi(2, True, 0); epi(3, True, 0)
    a.items += sprinkle(tail.items, w2g, 40)
    stamp(f"p3_epi{layer}")
    team_flag_off(75)
    a("s_waitcnt vmcnt(0)")
    flag_store(75, 3 + 4*layer, True)
    if layer == 0: a(f"s_branch L_p3done{layer}")
    a.label(lab_skip)
    if layer == 0:
        a.vm_reset(); a.lg_reset()
        import copy
        for x in W2G: a.items += copy.deepcopy(x)
        a("s_waitcnt vmcnt(0)")
        a.label(f"L_p3done{layer}")
    a.vm_reset(); a.lg_reset()

def p4(layer):
    sTB, sTTO, sTTX, sNT = 60, 61, 62, 63
    sA, sB, sF = 52, 53, 54
    a("s_barrier")
    a(f"s_lshr_b32 s{sTB}, s{sIDX}, 3")
    a(f"s_lshl_b32 s{sTB}, s{sTB}, 1")
    a(f"s_lshr_b32 s74, s{sWAVE}, 1")
    a(f"s_add_u32 s{sTTO}, s{sTB}, s74")
    a(f"s_xor_b32 s{sTTX}, s{sTTO}, 1")
    a(f"s_and_b32 s{sNT}, s{sIDX}, 7")
    a(f"s_lshl_b32 s{sNT}, s{sNT}, 1")
    a(f"s_and_b32 s74, s{sWAVE}, 1")
    a(f"s_add_u32 s{sNT}, s{sNT}, s74")
    R, RES = 192, 200
    load_resid(RES, sTTO, sNT, False, 232)
    make_R(R, 226)
    finish_addr(sTTO, sNT, layer == 1, sA, sB, 240)
    team_flag_off(sF)
    for st, sr in ((sTTX, 55), (sTTO, 59)):
        tile_base(sr, 112*1024, st)
        a(f"s_mul_i32 s76, s{sWAVE}, {28*1024}")
        a(f"s_add_u32 s{sr}, s{sr}, s76")
        a(f"s_add_u32 s{sr}, s{sr}, {WS_H}")
    for n, x in enumerate((1, 2, 3)):
        a(f"s_xor_b32 s74, s{sWAVE}, {x}")
        a("s_lshl_b32 s75, s74, 14")
        a(f"s_lshl_b32 s76, s{sWAVE}, 12")
        a("s_add_u32 s75, s75, s76")
        a(f"s_add_u32 s75, s75, {R3}")
        a(f"v_add_u32 v{208+n}, s75, v{vL16}")
        a("s_lshl_b32 s75, s74, 12")
        a(f"s_lshl_b32 s76, s{sWAVE}, 14")
        a("s_add_u32 s75, s75, s76")
        a(f"s_add_u32 s75, s75, {R3}")
        a(f"v_add_u32 v{212+n}, s75, v{vL16}")
    wq_pre, wq_groups = ([], [])
    a(f"s_mul_i32 s74, s{sWAVE}, 7")
    a("s_lshr_b32 s74, s74, 1")
    a("s_lshl_b32 s74, s74, 2")
    a(f"s_add_u32 s74, s74, s{sTB}")
    a("s_mov_b64 s[64:65], 0x3333")
    a("s_lshl_b64 s[64:65], s[64:65], s74")
    team_poll(3 + 4*layer, "s64", "s65")
    stamp(f"p4_polled{layer}")
    ACC = {("x", 0): 128, ("x", 1): 144, ("o", 0): 160, ("o", 1): 176}
    RING = 32; LD = 10
    def hload(f):
        trel, ks = ("x", f) if f < 28 else ("o", f - 28)
        sr = 55 if f < 28 else 59
        if ks % 4 == 0 and ks: a(f"s_add_u32 s{sr}, s{sr}, 4096")
        a(f"buffer_load_dwordx4 {v(4*(f%RING),4)}, v{vL16}, {srd(S_WS)}, s{sr} offen offset:{(ks%4)*1024} sc1", tag=f"h{f}")
    for f in range(LD): hload(f)
    a(f"{MF} {v(ACC[('o',0)],16)}, {v(R,4)}, {v(RES,4)}, 0")
    a(f"{MF} {v(ACC[('o',0)],16)}, {v(R+4,4)}, {v(RES+4,4)}, {v(ACC[('o',0)],16)}")
    gi = 0
    for f in range(56):
        trel, ks = ("x", f) if f < 28 else ("o", f - 28)
        a.wait_vm(f"h{f}")
        for slot in (1, 0):
            acc = ACC[(trel, slot)]
            first = (ks == 0) and not (trel == "o" and slot == 0)
            a(f"{MF} {v(acc,16)}, {ag((ks*2+slot)*4,4)}, {v(4*(f%RING),4)}, {'0' if first else v(acc,16)}")
            if slot == 1 and f + LD < 56: hload(f + LD)
        if f % 2 == 0 and gi < len(wq_groups):
            a.items += wq_groups[gi]; gi += 1
        if f == 30:
            for q in range(4): a(f"ds_write_b128 v209, {v(ACC[('x',0)]+4*q,4)} offset:{q*1024}")
        if f == 32:
            for q in range(4): a(f"ds_write_b128 v210, {v(ACC[('x',1)]+4*q,4)} offset:{q*1024}")
    stamp(f"p4_mm_done{layer}")
    for q in range(4): a(f"ds_write_b128 v208, {v(ACC[('o',1)]+4*q,4)} offset:{q*1024}")
    a("s_waitcnt lgkmcnt(0)")
    a("s_barrier")
    for n in range(3):
        for q in range(4): a(f"ds_read_b128 {v(16*n+4*q,4)}, v{212+n} offset:{q*1024}", tag=f"ex{n}")
    A0 = ACC[("o", 0)]
    for n in range(3):
        a.wait_lgkm(f"ex{n}")
        for i in range(8): pk("v_pk_add_f32", A0+2*i, A0+2*i, 16*n+2*i)
    finish_tile(A0, 216, 224, 4 + 4*layer, layer == 1, sA, sB, 240, sF)

def dump_regs(r, n, slot):
    a(f"s_lshl_b32 s74, s2, 2")
    a(f"s_add_u32 s74, s74, s{sWAVE}")
    a(f"s_lshl_b32 s74, s74, 15")
    a(f"s_add_u32 s74, s74, {WS_DBG + slot*4096}")
    a(f"v_lshlrev_b32 v239, 2, v{vLANE}")
    for i in range(n):
        a(f"buffer_store_dword v{r+i}, v239, {srd(S_WS)}, s74 offen offset:{i*256}")
    a("s_waitcnt vmcnt(0)")

def epilogue():
    a.label("L_end")
    a("s_endpgm")

def run_all():
    prologue()
    stamp("start")
    for layer in range(2):
        p1(layer)
        if STOP == 1 + 5*layer: return
        p15(layer)
        stamp(f"p15_end{layer}")
        if STOP == 2 + 5*layer: return
        p2(layer)
        stamp(f"p2_end{layer}")
        if STOP == 3 + 5*layer: return
        p3(layer)
        stamp(f"p3_end{layer}")
        if STOP == 4 + 5*layer: return
        p4(layer)
        stamp(f"p4_end{layer}")
        if STOP == 5 + 5*layer: return
run_all()
stamp_flush()
epilogue()

def flatten(items):
    out = []
    for it in items:
        if isinstance(it, tuple) and it[0] == "GROUP": out += flatten(it[1])
        else: out.append(it)
    return out
body = finalize(flatten(a.items), verbose=True)
hdr = open(f"cdna_kernels/{NAME}.s.ref").read().split("; Override launch geometry")[0]
src = hdr + "; @launch grid=(256,1,1) block=(256,1,1) lds=163840\n"
src += f""".amdgcn_target "amdgcn-amd-amdhsa--gfx950"
.text
.globl {NAME}_kernel
.p2align 8
.type {NAME}_kernel,@function
{NAME}_kernel:
{body}
.section .rodata,"a"
.p2align 6
.amdhsa_kernel {NAME}_kernel
  .amdhsa_next_free_vgpr 512
  .amdhsa_next_free_sgpr 100
  .amdhsa_accum_offset 256
  .amdhsa_group_segment_fixed_size 0
  .amdhsa_kernarg_size 80
  .amdhsa_user_sgpr_count 2
  .amdhsa_user_sgpr_kernarg_segment_ptr 1
  .amdhsa_system_sgpr_workgroup_id_x 1
.end_amdhsa_kernel
"""
open(OUT, "w").write(src)
print("wrote", OUT, len(src), "bytes")
```
